```python
import torch

def _softmax(x, axis=-1):
    return torch.softmax(x, dim=axis)
def _gelu(x):
    return torch.nn.functional.gelu(x, approximate="tanh")
def _silu(x):
    return torch.nn.functional.silu(x)
def _sigmoid(x):
    return torch.sigmoid(x)
def _layernorm(x, axis=-1, eps=1e-5):
    m = x.mean(dim=axis, keepdim=True)
    v = x.var(dim=axis, keepdim=True, unbiased=False)
    return (x - m) / torch.sqrt(v + eps)
def _scatter_add(tgt, idx, src, axis=0):
    return tgt.clone().index_add_(axis, idx, src)
def _segment_sum(src, seg, n):
    out = torch.zeros((n,) + src.shape[1:], dtype=src.dtype)
    return out.index_add_(0, seg, src)
def _pad(x, pw):
    flat = tuple(v for pair in reversed(pw) for v in pair)
    return torch.nn.functional.pad(x, flat)

kernel_name = 'standalone__window_attn_swin__vision'

def setup_inputs():

    _w = (lambda a: (lambda t: t.to(torch.bfloat16) if t.is_floating_point() else t)(torch.as_tensor(a)))
    H = W = 224
    C = 192
    ws = 8
    nh = 4
    shift = ws // 2
    coords = torch.stack(torch.meshgrid(torch.arange(ws), torch.arange(ws), indexing='ij'), 0).reshape(2, -1)
    rel = coords[:, :, None] - coords[:, None, :]
    rel[0] += ws - 1
    rel[1] += ws - 1
    rel[0] *= 2 * ws - 1
    rp_idx = rel.sum(0).to(torch.int64)
    img_mask = torch.zeros((1, H, W, 1), dtype=float)
    cnt = 0
    for hs in (slice(0, H - ws), slice(H - ws, H - shift), slice(H - shift, H)):
        for vs in (slice(0, W - ws), slice(W - ws, W - shift), slice(W - shift, W)):
            img_mask[:, hs, vs, :] = cnt
            cnt += 1
    mw = img_mask.reshape(1, H // ws, ws, W // ws, ws, 1).permute(0, 1, 3, 2, 4, 5).reshape(-1, ws * ws)
    am = mw[:, :, None] - mw[:, None, :]
    attn_mask = torch.where(am != 0, -100.0, 0.0).to(float)
    return {
        "x": _w((lambda *s: torch.randn(*s, dtype=torch.bfloat16) * 1.6)(1, H, W, C)),
        "wqkv": _w((lambda *s: torch.randn(*s, dtype=torch.bfloat16) * 1.6)(C, 3 * C) * 0.02),
        "wo": _w((lambda *s: torch.randn(*s, dtype=torch.bfloat16) * 0.05)(C, C) * 0.02),
        "rpb": _w((lambda *s: torch.randn(*s, dtype=torch.bfloat16) * 0.2)((2 * ws - 1) * (2 * ws - 1), nh)),
        "rp_idx": _w(rp_idx),
        "attn_mask": _w(attn_mask),
    }

def reference(x, wqkv, wo, rpb, rp_idx, attn_mask):
    B, H, W, C = x.shape
    N = rp_idx.shape[0]
    ws = int(round(N ** 0.5))
    nh = rpb.shape[-1]
    hd = C // nh
    shift = ws // 2
    xs = torch.roll(x, (-shift, -shift), (1, 2))
    nWh = H // ws
    nWw = W // ws
    xw = (lambda x, *d: x.permute(*d))(xs.reshape(B, nWh, ws, nWw, ws, C), 0, 1, 3, 2, 4, 5).reshape(B * nWh * nWw, N, C)
    qkv = (lambda x, *d: x.permute(*d))(torch.einsum('wnc,cd->wnd', xw, wqkv).reshape(-1, N, 3, nh, hd), 2, 0, 3, 1, 4)
    q, k, v = qkv[0], qkv[1], qkv[2]
    attn = torch.einsum('whid,whjd->whij', q, k) * (hd ** -0.5)
    bias = (lambda x, *d: x.permute(*d))(rpb[rp_idx.reshape(-1)].reshape(N, N, nh), 2, 0, 1)
    attn = attn + bias[None, :, :, :]
    attn = (attn.reshape(B, nWh * nWw, nh, N, N) + attn_mask[None, :, None, :, :]).reshape(-1, nh, N, N)
    attn = _softmax(attn, axis=-1)
    out = (lambda x, *d: x.permute(*d))(torch.einsum('whij,whjd->whid', attn, v), 0, 2, 1, 3).reshape(-1, N, C)
    out = torch.einsum('wnc,cd->wnd', out, wo)
    out = (lambda x, *d: x.permute(*d))(out.reshape(B, nWh, nWw, ws, ws, C), 0, 1, 3, 2, 4, 5).reshape(B, H, W, C)
    return torch.roll(out, (shift, shift), (1, 2))
```

```python
import re

def V(n, cnt=1): return [('v', n + i) for i in range(cnt)]
def A(n, cnt=1): return [('a', n + i) for i in range(cnt)]
def S(n, cnt=1): return [('s', n + i) for i in range(cnt)]

def rtxt(kind, n, cnt):
    return f"{kind}{n}" if cnt == 1 else f"{kind}[{n}:{n + cnt - 1}]"

class R:
    def __init__(self, kind, n, cnt=1):
        self.kind, self.n, self.cnt = kind, n, cnt
    def regs(self): return [(self.kind, self.n + i) for i in range(self.cnt)]
    def __str__(self): return rtxt(self.kind, self.n, self.cnt)
def v(n, cnt=1): return R('v', n, cnt)
def a(n, cnt=1): return R('a', n, cnt)
def s(n, cnt=1): return R('s', n, cnt)

class Inst:
    __slots__ = ('text', 'kind', 'reads', 'writes', 'tag', 'cost', 'nbytes', 'srcc', 'srcab', 'lds_rd', 'lds_wr',
                 'wait_lgkm', 'wait_vm', 'nops', 'idx', 'prio', 'preds', 'succs', 't', 'tail', 'store_data', 'fixwait', 'note', 'early')
    def __init__(self, text, kind, reads=(), writes=(), tag=None, cost=4, nbytes=8):
        self.text, self.kind = text, kind
        self.reads, self.writes = set(reads), set(writes)
        self.tag, self.cost, self.nbytes = tag, cost, nbytes
        self.srcc = set(); self.srcab = set()
        self.lds_rd = set(); self.lds_wr = set()
        self.wait_lgkm = None; self.wait_vm = None; self.nops = 0
        self.tail = 0
        self.store_data = set()
        self.fixwait = None
        self.note = ''
        self.early = 0
    def __repr__(self): return self.text

def _ops(*xs):
    rd = []
    for x in xs:
        if isinstance(x, R): rd += x.regs()
        elif isinstance(x, str) and x in ('vcc', 'm0', 'exec', 'scc'): rd.append((x, 0))
    return rd

TRANS = {'v_exp_f32', 'v_rcp_f32', 'v_log_f32', 'v_rsq_f32', 'v_sqrt_f32'}
VOP3 = {'v_fma_f32', 'v_max3_f32', 'v_cvt_pk_bf16_f32', 'v_mul_lo_u32', 'v_mad_u32_u24', 'v_lshl_add_u32', 'v_add3_u32',
        'v_bfe_u32', 'v_and_or_b32', 'v_lshl_or_b32', 'v_add_lshl_u32', 'v_mul_hi_u32', 'v_perm_b32', 'v_accvgpr_write_b32',
        'v_accvgpr_read_b32', 'v_xad_u32', 'v_min3_u32', 'v_bfi_b32'}

class Prog:
    def __init__(self):
        self.insts = []
        self.tag = None
    def add(self, i):
        if i.tag is None: i.tag = self.tag
        self.insts.append(i); return i
    def valu(self, op, dst, *srcs, extra_reads=(), extra_writes=(), mods=''):
        txt = f"{op} {dst}, " + ", ".join(str(x) for x in srcs) + mods
        rd = _ops(*srcs) + list(extra_reads)
        wr = _ops(dst) + list(extra_writes)
        if op in ('v_fmac_f32',): rd += _ops(dst)
        lit = any(isinstance(x, (int,)) and not (-16 <= x <= 64) for x in srcs) or any(isinstance(x, str) and x.startswith('0x') for x in srcs)
        nb = 8 if (op in VOP3 or lit or mods or any(isinstance(x, str) and x.startswith('-') for x in srcs)) else 4
        if op in TRANS: return self.add(Inst(txt, 'trans', rd, wr, cost=8, nbytes=nb))
        return self.add(Inst(txt, 'valu', rd, wr, cost=4, nbytes=nb))
    def swap(self, op, x, y):
        return self.add(Inst(f"{op} {x}, {y}", 'perm', _ops(x, y), _ops(x, y), cost=8, nbytes=4))
    def rfl(self, dst, src):
        return self.add(Inst(f"v_readfirstlane_b32 {dst}, {src}", 'rfl', _ops(src), _ops(dst), cost=4, nbytes=4))
    def salu(self, op, dst, *srcs, scc_w=None, scc_r=False):
        args = ([str(dst)] if dst is not None else []) + [str(x) for x in srcs]
        txt = f"{op} " + ", ".join(args)
        rd = _ops(*srcs); wr = _ops(dst) if dst is not None else []
        if scc_w is None: scc_w = op not in ('s_mov_b32', 's_mov_b64', 's_mul_i32', 's_mul_hi_u32', 's_cselect_b32', 's_movk_i32', 's_getpc_b64')
        if op.startswith('s_cselect') or op in ('s_addc_u32', 's_subb_u32'): scc_r = True
        if scc_w: wr.append(('scc', 0))
        if scc_r: rd.append(('scc', 0))
        lit = any(isinstance(x, int) and not (-16 <= x <= 64) for x in srcs) or any(isinstance(x, str) and x.startswith('0x') for x in srcs)
        return self.add(Inst(txt, 'salu', rd, wr, cost=4, nbytes=8 if lit else 4))
    def mfma(self, big, d, A_, B_, c):
        op = 'v_mfma_f32_32x32x16_bf16' if big else 'v_mfma_f32_16x16x32_bf16'
        i = Inst(f"{op} {d}, {A_}, {B_}, {c}", 'mfma32' if big else 'mfma16', _ops(A_, B_, c), _ops(d), cost=8)
        i.srcc = set(_ops(c)); i.srcab = set(_ops(A_, B_))
        return self.add(i)
    def dsr(self, op, dst, addr, off=0, lds=()):
        assert 0 <= off < 65536, off
        i = Inst(f"{op} {dst}, {addr}" + (f" offset:{off}" if off else ""), 'dsr', _ops(addr) + list(lds), _ops(dst))
        i.lds_rd = set(lds)
        return self.add(i)
    def dsw(self, op, addr, data, off=0, lds=()):
        assert 0 <= off < 65536, off
        i = Inst(f"{op} {addr}, {data}" + (f" offset:{off}" if off else ""), 'dsw', _ops(addr, data), list(lds))
        i.lds_wr = set(lds)
        return self.add(i)
    def dma(self, voff, srd, soff, lds=(), off=0, mod=''):
        i = Inst(f"buffer_load_dwordx4 {voff}, {srd}, {soff} offen" + (f" offset:{off}" if off else "") + mod + " lds", 'dma',
                 _ops(voff, srd, soff, 'm0'), list(lds))
        i.lds_wr = set(lds)
        return self.add(i)
    def bload(self, op, dst, voff, srd, soff, off=0, mod=''):
        return self.add(Inst(f"{op} {dst}, {voff}, {srd}, {soff} offen" + (f" offset:{off}" if off else "") + mod, 'vld',
                             _ops(voff, srd, soff), _ops(dst)))
    def bstore(self, op, data, voff, srd, soff, off=0, mod=''):
        i = Inst(f"{op} {data}, {voff}, {srd}, {soff} offen" + (f" offset:{off}" if off else "") + mod, 'vst',
                 _ops(data, voff, srd, soff), [])
        if data.cnt >= 3: i.store_data = set(data.regs())
        return self.add(i)
    def raw(self, text, kind='misc', reads=(), writes=(), cost=4, nbytes=4):
        return self.add(Inst(text, kind, reads, writes, cost=cost, nbytes=nbytes))
    def barrier(self, reads=(), writes=(), vm=None, lgkm=0):
        i = Inst("s_barrier", 'barrier', reads, writes, cost=4, nbytes=4)
        i.fixwait = (vm, lgkm)
        return self.add(i)
    def label(self, name):
        return self.add(Inst(f"{name}:", 'label', cost=0, nbytes=0))

ISMFMA = ('mfma32', 'mfma16')
ISVALU = ('valu', 'trans', 'perm', 'rfl')
MEMK = ('dsr', 'dsw', 'dma', 'vld', 'vst')

LAT_DS = 128
LAT_VM = 1500

def dep_latency(p, c, reg, kind):
    if kind == 'raw':
        if p.kind in ISMFMA:
            big = p.kind == 'mfma32'
            if c.kind == p.kind and reg in c.srcc and c.srcc == p.writes: return 32 if big else 16
            return 84 if big else 52
        if p.kind == 'dsr': return LAT_DS
        if p.kind in ('vld', 'dma'): return LAT_VM
        if p.kind == 'dsw': return 64
        if p.kind in ISVALU:
            if c.kind in ISMFMA or c.kind == 'perm': return p.cost + 8
            if p.kind == 'trans': return p.cost + 4
            if reg[0] == 's': return p.cost + 20
            return p.cost
        return p.cost
    if kind == 'waw':
        if p.kind in ISMFMA:
            if c.kind == p.kind and c.srcc == p.writes: return 32 if p.kind == 'mfma32' else 16
            return 84 if p.kind == 'mfma32' else 52
        if p.kind == 'dma' and c.kind == 'dma': return 4
        if p.kind == 'dsr': return LAT_DS
        if p.kind in ('vld', 'dma'): return LAT_VM
        return p.cost
    if p.kind in ISMFMA and reg in p.srcc and c.kind in ISVALU: return 40
    if p.kind == 'dsr' and reg in p.lds_rd: return LAT_DS
    if p.kind == 'vst' and reg in p.store_data: return p.cost + 8
    return p.cost

def build_dag(insts):
    lastw = {}; readers = {}
    last_mfma = None
    lastk = {}
    for n, i in enumerate(insts):
        i.idx = n; i.preds = {}; i.succs = []
    def edge(p, c, lat):
        if p is c: return
        if c.preds.get(p, -1) < lat: c.preds[p] = lat
    for i in insts:
        for r in i.reads:
            if r in lastw: edge(lastw[r], i, dep_latency(lastw[r], i, r, 'raw'))
        for r in i.writes:
            if r in lastw: edge(lastw[r], i, dep_latency(lastw[r], i, r, 'waw'))
            for p in readers.get(r, ()): edge(p, i, dep_latency(p, i, r, 'war'))
        for r in i.reads: readers.setdefault(r, []).append(i)
        for r in i.writes: lastw[r] = i; readers[r] = []
        if i.kind in ISMFMA:
            if last_mfma is not None: edge(last_mfma, i, 32 if last_mfma.kind == 'mfma32' else 16)
            last_mfma = i
        if i.kind in ('dma', 'vld', 'vst'):
            if 'vm' in lastk: edge(lastk['vm'], i, 4)
            lastk['vm'] = i
    for i in insts:
        for p in i.preds: p.succs.append(i)

def schedule(insts, verbose=False, name=''):
    build_dag(insts)
    for i in reversed(insts):
        best = i.cost + i.tail
        if i.kind in ISMFMA: best = max(best, 32 if i.kind == 'mfma32' else 16)
        for c in i.succs: best = max(best, c.preds[i] + c.prio)
        i.prio = best + i.early
    npred = {i: len(i.preds) for i in insts}
    ready_t = {i: 0 for i in insts}
    avail = [i for i in insts if npred[i] == 0]
    out = []; t = 0; shadow = -1
    fetch = 0.0
    while avail:
        mf = [i for i in avail if i.kind in ISMFMA]
        tm = min((ready_t[i] for i in mf), default=None)
        cands = [i for i in avail if ready_t[i] <= t]
        pick = None
        if cands:
            m = [i for i in cands if i.kind in ISMFMA]
            others = [i for i in cands if i.kind not in ISMFMA]
            if m:
                mm = m[0]
                hot = [i for i in others if i.prio > mm.prio + 16]
                pick = max(hot, key=lambda i: (i.prio, -i.idx)) if hot else mm
            else:
                if tm is not None:
                    fit = [i for i in others if t + i.cost <= tm]
                    mprio = mf[0].prio
                    hot = [i for i in others if i.prio > mprio + (tm - t) + 8]
                    if fit or hot:
                        pool = fit + [i for i in hot if i not in fit]
                        pick = max(pool, key=lambda i: (i.prio, -i.idx))
                    else:
                        pick = None
                else:
                    pick = max(others, key=lambda i: (i.prio, -i.idx))
        if pick is None:
            fut = [ready_t[i] for i in avail if ready_t[i] > t]
            t = min(fut)
            continue
        pick.t = t
        out.append(pick); avail.remove(pick)
        c = pick.cost
        if pick.kind == 'salu' and shadow == t: c = 0; shadow = -1
        t += c
        if pick.kind in ISMFMA: shadow = t
        for sc in pick.succs:
            rt = pick.t + sc.preds[pick]
            if rt > ready_t[sc]: ready_t[sc] = rt
            npred[sc] -= 1
            if npred[sc] == 0: avail.append(sc)
    assert len(out) == len(insts)
    if verbose:
        nm = sum(32 for i in out if i.kind == 'mfma32') + sum(16 for i in out if i.kind == 'mfma16')
        print(f"[sched {name}] {len(out)} insts, est {t} cycles, mfma busy {nm}, bytes {sum(i.nbytes for i in out)}")
    return out

def waitcnt_pass(paths):
    changed = True
    while changed:
        changed = False
        for path in paths:
            ds = []
            vm = []
            for i in path:
                need_l = None; need_v = None
                touched = i.reads | i.writes
                for k, o in enumerate(ds):
                    after = len(ds) - 1 - k
                    hit = False
                    if o.kind == 'dsr':
                        if (o.writes & touched) or (o.lds_rd & i.writes and i.kind not in ('dsw',)): hit = True
                    else:
                        if o.lds_wr & touched and i.kind not in ('dsr', 'dsw'): hit = True
                    if hit: need_l = after if need_l is None else min(need_l, after)
                for k, o in enumerate(vm):
                    after = len(vm) - 1 - k
                    if o.kind in ('vld', 'dma') and (o.writes & touched) and not (o.kind == 'dma' and i.kind == 'dma'):
                        need_v = after if need_v is None else min(need_v, after)
                if i.fixwait is not None:
                    fv, fl = i.fixwait
                    if fl is not None and len(ds) > fl: need_l = fl if need_l is None else min(need_l, fl)
                    if fv is not None and len(vm) > fv: need_v = fv if need_v is None else min(need_v, fv)
                if need_l is not None:
                    need_l = min(need_l, 15)
                    if i.wait_lgkm is None or need_l < i.wait_lgkm: i.wait_lgkm = need_l; changed = True
                if need_v is not None:
                    need_v = min(need_v, 63)
                    if i.wait_vm is None or need_v < i.wait_vm: i.wait_vm = need_v; changed = True
                if i.wait_lgkm is not None and len(ds) > i.wait_lgkm: ds = ds[len(ds) - i.wait_lgkm:] if i.wait_lgkm else []
                if i.wait_vm is not None and len(vm) > i.wait_vm: vm = vm[len(vm) - i.wait_vm:] if i.wait_vm else []
                if i.kind in ('dsr', 'dsw'): ds.append(i)
                if i.kind in ('vld', 'dma', 'vst'): vm.append(i)
                assert len(vm) <= 63, "too many vmem ops outstanding"

def required_ws(p, c):
    need = 0
    pv = p.kind in ISVALU; cv = c.kind in ISVALU
    vw = {r for r in p.writes if r[0] in 'va'}
    if pv:
        if c.kind in ISMFMA and (vw & c.reads): need = max(need, 2)
        if c.kind == 'perm' and (vw & c.reads): need = max(need, 2)
        if c.kind == 'rfl' and (vw & c.reads): need = max(need, 1)
        if p.kind == 'trans' and cv and c.kind != 'trans' and (vw & c.reads): need = max(need, 1)
        sw = {r for r in p.writes if r[0] in ('s', 'vcc')}
        if sw & c.reads:
            if c.kind in ('dma', 'vld', 'vst'): need = max(need, 5)
            elif cv: need = max(need, 2)
            elif c.kind == 'salu' or c.kind == 'misc': need = max(need, 2)
    if p.kind in ISMFMA:
        big = p.kind == 'mfma32'
        if c.kind in ISMFMA:
            if p.writes & c.srcab: need = max(need, 12 if big else 8)
            if p.writes & c.srcc:
                if not (c.kind == p.kind and c.srcc == p.writes): need = max(need, 10 if big else 6)
            elif p.writes & c.writes: need = max(need, 10 if big else 6)
        else:
            if p.writes & (c.reads | c.writes): need = max(need, 12 if big else 8)
            if cv and (p.srcc & c.writes): need = max(need, 7 if big else 3)
    if p.kind == 'vst' and p.store_data & c.writes: need = max(need, 2)
    if p.kind == 'salu' and ('m0', 0) in p.writes and c.kind == 'dma': need = max(need, 1)
    return need

def hazard_pass(paths):
    changed = True
    while changed:
        changed = False
        for path in paths:
            real = [i for i in path if i.kind != 'label']
            for n, c in enumerate(real):
                dist = c.nops + (1 if (c.wait_lgkm is not None or c.wait_vm is not None) else 0)
                k = n - 1
                while k >= 0 and dist < 12:
                    p = real[k]
                    need = required_ws(p, c)
                    if need > dist:
                        c.nops += need - dist; dist = need; changed = True
                    dist += 1 + p.nops + (1 if (p.wait_lgkm is not None or p.wait_vm is not None) else 0)
                    k -= 1

def emit(insts):
    out = []
    for i in insts:
        if i.kind == 'label':
            out.append(i.text); continue
        n = i.nops
        while n > 0:
            k = min(n, 16); out.append(f"    s_nop {k - 1}"); n -= k
        if i.wait_lgkm is not None or i.wait_vm is not None:
            w = []
            if i.wait_vm is not None: w.append(f"vmcnt({i.wait_vm})")
            if i.wait_lgkm is not None: w.append(f"lgkmcnt({i.wait_lgkm})")
            out.append("    s_waitcnt " + " ".join(w))
        out.append("    " + i.text + (f"    ; {i.note}" if i.note else ""))
    return out
```

```python
import sys, math, struct, os
sys.path.insert(0, os.path.dirname(__file__))
from asmlib import *

NAME = "standalone__window_attn_swin__vision"
NWIN = 784
NWG = 256
ROWB = 86016
XBYTES = 19267584

def f2u(x): return struct.unpack('<I', struct.pack('<f', x))[0]
def hx(x): return f"0x{x & 0xffffffff:08x}"

LOG2E = math.log2(math.e)
CSC = LOG2E / math.sqrt(48.0)
MVC = -100.0 * LOG2E
SQ48 = math.sqrt(48.0)

X0, X1 = 0, 24576
O0, O1 = 49152, 73728
WOL = 98304
BIAS = 135168
LDS_TOTAL = 152576
CBASE = [0, 66, 136, 202]

vX32 = [2, 3, 4, 5]; vX16 = [6, 7, 8, 9]; vOR = [10, 11]; vOW = 12; vBI = 13; vWOL = 14
XC = [15, 16, 17]; YC = 18; YR = 19; vCM = 20
DV = [21, 22, 23]; DT = 24; vY = 25; vMs = 26; vMd = 27
SMX = [[28, 29, 30, 31, 32], [33, 34, 35, 36, 37]]
RCP = [38, 39]
R1, R2, R3, R4 = 48, 112, 160, 208
def aQK(st, T): return a((st * 3 + T) * 4, 4)
def aV(st, dt): return a(144 + (st * 3 + dt) * 4, 4)
def aWO(st, et): return a(216 + (st * 3 + et) * 4, 4)
sX, sY, sWQ, sWO, sRP = 4, 8, 12, 16, 20
sWV = 24; sW = 25; sD = 26; sC = 27; sYO = [28, 29, 30, 31]; sXO = [32, 33]
sXB = 40; sMAG = 41; sRow = 42; sCol = 43; sWVROW = 44
T = list(range(72, 100))
LL = list(range(58, 72)) + [45, 46, 47]

L = lambda n: ('L', n)

class G(Prog):
    def __init__(self):
        super().__init__()
        self.tn = 0
    def st(self):
        r = T[self.tn % len(T)]; self.tn += 1
        return s(r)

    def coords(self, w):
        wh, t, ww = self.st(), self.st(), self.st()
        self.salu('s_mul_hi_u32', wh, w, s(sMAG))
        self.salu('s_mul_i32', t, wh, 28)
        self.salu('s_sub_u32', ww, w, t)
        return wh, ww

    def x_dma(self, delta, xb, lds, check):
        w = self.st()
        self.salu('s_add_u32', w, s(sW), delta)
        if check:
            self.salu('s_cmp_lt_u32', None, w, NWIN)
            self.salu('s_cselect_b32', s(sX + 2), hx(XBYTES), 0)
        wh, ww = self.coords(w)
        t = self.st()
        self.salu('s_mul_i32', t, wh, 8 * ROWB)
        self.salu('s_add_u32', t, t, s(sWVROW))
        self.salu('s_add_u32', s(sXO[0]), t, 4 * ROWB)
        t2 = self.st()
        self.salu('s_add_u32', t2, t, 8 * ROWB)
        self.salu('s_cmp_eq_u32', None, wh, 27)
        self.salu('s_cselect_b32', s(sXO[1]), s(sWVROW), t2)
        col = self.st()
        self.salu('s_mul_i32', col, ww, 3072)
        self.salu('s_add_u32', col, col, 1536)
        for k in range(3):
            self.valu('v_add_u32', v(DV[k]), col, v(XC[k]))
            self.valu('v_subrev_u32', v(DT), hx(ROWB), v(DV[k]))
            self.valu('v_min_u32', v(DV[k]), v(DV[k]), v(DT))
        for r in range(2):
            for k in range(3):
                self.salu('s_add_u32', 'm0', xb, r * 4 * 3072 + k * 1024)
                self.dma(v(DV[k]), s(sX, 4), s(sXO[r]), lds=lds[r])

    def y_addr(self, delta):
        w = self.st()
        self.salu('s_add_u32', w, s(sW), delta)
        wh, ww = self.coords(w)
        t = self.st()
        self.salu('s_mul_i32', t, wh, 8 * ROWB)
        self.salu('s_add_u32', s(sYO[0]), t, 4 * ROWB)
        self.salu('s_add_u32', s(sYO[1]), t, 6 * ROWB)
        self.salu('s_add_u32', t, t, 8 * ROWB)
        self.salu('s_cmp_eq_u32', None, wh, 27)
        self.salu('s_cselect_b32', s(sYO[2]), 0, t)
        self.salu('s_add_u32', s(sYO[3]), s(sYO[2]), 2 * ROWB)
        col = self.st()
        self.salu('s_mul_i32', col, ww, 3072)
        self.salu('s_add_u32', col, col, 1536)
        self.valu('v_add_u32', v(vY), col, v(YC))
        self.valu('v_subrev_u32', v(DT), hx(ROWB), v(vY))
        self.valu('v_min_u32', v(vY), v(vY), v(DT))
        self.valu('v_add_u32', v(vY), v(vY), v(YR))

    def mask(self, delta):
        w = self.st()
        self.salu('s_add_u32', w, s(sW), delta)
        wh, ww = self.coords(w)
        self.salu('s_cmp_eq_u32', None, wh, 27)
        self.salu('s_cselect_b32', s(sRow), hx(f2u(MVC)), 0)
        self.salu('s_cmp_eq_u32', None, ww, 27)
        self.salu('s_cselect_b32', s(sCol), '1.0', 0)
        self.valu('v_mul_f32', v(vMs), s(sCol), v(vCM))
        self.valu('v_min_f32', v(vMd), s(sRow), v(vMs))

    def pack(self, dst, src, n):
        for k in range(n):
            self.valu('v_cvt_pk_bf16_f32', v(dst + k), v(src + 2 * k), v(src + 2 * k + 1))

    def x32_read(self, tt, st, buf, lds):
        return self.dsr('ds_read_b128', v(buf, 4), v(vX32[st & 3]), tt * 12288 + (st >> 2) * 128, lds=[lds])
    def qk_step(self, st, acc, buf):
        for Tt in range(3):
            d = v(acc + 16 * Tt, 16)
            self.mfma(True, d, aQK(st, Tt), v(buf, 4), d if st else 0)
    def qk(self, tt, acc, bufs, lds):
        for st in range(12):
            b = bufs[st % len(bufs)]
            self.x32_read(tt, st, b, lds)
            self.qk_step(st, acc, b)

    def x16_read(self, kt, u, st, buf, lds):
        return self.dsr('ds_read_b128', v(buf, 4), v(vX16[(st & 1) + 2 * u]), kt * 12288 + u * 3072 + (st >> 1) * 128, lds=[lds])
    def vproj(self, kt, acc, bufs, lds, skip_reads=0):
        n = 0
        for u in range(2):
            for st in range(6):
                b = bufs[(n + 12 * kt) % len(bufs)]
                if n >= skip_reads: self.x16_read(kt, u, st, b, lds)
                n += 1
                for dt in range(3):
                    d = v(acc + 8 * dt + 4 * u, 4)
                    self.mfma(False, d, v(b, 4), aV(st, dt), d if st else 0)
    def vfinish(self, kt, acc):
        blk = R3 + 16 * kt
        self.pack(blk, acc, 12)
        for i in range(4): self.valu('v_mov_b32', v(blk + 12 + i), '0x3f803f80')
        for i in range(4): self.swap('v_permlane16_swap_b32', v(blk + i), v(blk + 4 + i))
        for i in range(4): self.swap('v_permlane16_swap_b32', v(blk + 8 + i), v(blk + 12 + i))

    def bias_reads(self):
        out = []
        for qt in range(2):
            for kt in range(2):
                for a4 in range(4):
                    u = 4 * (qt - kt) - a4
                    out.append(self.dsr('ds_read_b128', v(R1 + 16 * (2 * qt + kt) + 4 * a4, 4), v(vBI), (4 - u) * 64, lds=[L('bias')]))
        return out

    def scores(self):
        base = [R2, R3]
        for qt in range(2):
            for kt in range(2):
                d = v(R1 + 16 * (2 * qt + kt), 16)
                for j in range(3):
                    self.mfma(True, d, v(base[kt] + 12 + 4 * j, 4), v(base[qt] + 4 * j, 4), d)

    def softmax(self, qt):
        mA, mB, tmp, o0, o1 = SMX[qt]
        M = [vMs if kt == qt else vMd for kt in range(2)]
        for kt, m in ((0, mA), (1, mB)):
            b = R1 + 16 * (2 * qt + kt)
            self.valu('v_max3_f32', v(m), v(b), v(b + 1), v(b + 2))
            for k in range(6):
                self.valu('v_max3_f32', v(m), v(m), v(b + 3 + 2 * k), v(b + 4 + 2 * k))
            self.valu('v_max_f32', v(m), v(m), v(b + 15))
            self.valu('v_fma_f32', v(m), v(m), s(sC), v(M[kt]))
        self.valu('v_max_f32', v(mA), v(mA), v(mB))
        self.valu('v_mov_b32', v(tmp), v(mA))
        self.swap('v_permlane32_swap_b32', v(mA), v(tmp))
        self.valu('v_max_f32', v(mA), v(mA), v(tmp))
        self.valu('v_sub_f32', v(o0), v(M[0]), v(mA))
        self.valu('v_sub_f32', v(o1), v(M[1]), v(mA))
        for kt, o in ((0, o0), (1, o1)):
            ti = 2 * qt + kt
            b = R1 + 16 * ti
            for k in range(8):
                for e in range(2):
                    r = b + 2 * k + e
                    self.valu('v_fma_f32', v(r), v(r), s(sC), v(o))
                    self.valu('v_exp_f32', v(r), v(r))
                self.valu('v_cvt_pk_bf16_f32', v(R1 + 8 * ti + k), v(b + 2 * k), v(b + 2 * k + 1))

    OACC = [[R4, R4 + 16], [R4 + 32, R1 + 32]]
    def pv(self, qt):
        first = True
        for kt in range(2):
            for half in range(2):
                B = v(R1 + 8 * (2 * qt + kt) + 4 * half, 4)
                for tile in range(2):
                    d = v(self.OACC[qt][tile], 16)
                    Aop = v(R3 + 16 * kt + 8 * tile + 4 * half, 4)
                    self.mfma(True, d, Aop, B, 0 if first else d)
                first = False
    def ofinish(self, qt):
        t0, t1 = self.OACC[qt]
        self.valu('v_rcp_f32', v(RCP[qt]), v(t1 + 8))
        for z in range(3):
            src = (t0, t0 + 8, t1)[z]
            dst = (t0, t0 + 4, t1)[z]
            for k in range(4):
                self.valu('v_mul_f32', v(src + 2 * k), v(RCP[qt]), v(src + 2 * k))
                self.valu('v_mul_f32', v(src + 2 * k + 1), v(RCP[qt]), v(src + 2 * k + 1))
                self.valu('v_cvt_pk_bf16_f32', v(dst + k), v(src + 2 * k), v(src + 2 * k + 1))
            self.dsw('ds_write_b128', v(vOW), v(dst, 4), qt * 12288 + z * 128, lds=[L('Oc')])

    def wol_reads(self, st, base):
        for et in range(3):
            for u in range(2):
                self.dsr('ds_read_b64_tr_b16', v(base + 4 * et + 2 * u, 2), v(vWOL), (st - 3) * 3072 + u * 384 + 8 * et, lds=[L('wol')])
    def outproj(self, obufs, wbufs, lds):
        n = 0
        last = None
        for st in range(6):
            if st >= 3:
                wb = wbufs[(st - 3) % len(wbufs)]
                self.wol_reads(st, wb)
            for tt in range(4):
                b = obufs[n % len(obufs)]; n += 1
                self.dsr('ds_read_b128', v(b, 4), v(vOR[st & 1]), tt * 6144 + (st >> 1) * 128, lds=[lds])
                for et in range(3):
                    d = v(R4 + 12 * tt + 4 * et, 4)
                    Aop = aWO(st, et) if st < 3 else v(wb + 4 * et, 4)
                    last = self.mfma(False, d, Aop, v(b, 4), d if st else 0)
        return last
    def outproj_tok(self, obufs, wbase, lds):
        for st in range(3, 6): self.wol_reads(st, wbase + 12 * (st - 3))
        n = 0
        for tt in range(4):
            for st in range(6):
                b = obufs[n % len(obufs)]; n += 1
                self.dsr('ds_read_b128', v(b, 4), v(vOR[st & 1]), tt * 6144 + (st >> 1) * 128, lds=[lds])
                for et in range(3):
                    d = v(R4 + 12 * tt + 4 * et, 4)
                    Aop = aWO(st, et) if st < 3 else v(wbase + 12 * (st - 3) + 4 * et, 4)
                    self.mfma(False, d, Aop, v(b, 4), d if st else 0)
            self.yfinish1(tt)
    def yfinish1(self, tt):
        b = R4 + 12 * tt
        self.pack(b, b, 6)
        self.bstore('buffer_store_dwordx4', v(b, 4), v(vY), s(sY, 4), s(sYO[tt]))
        self.bstore('buffer_store_dwordx2', v(b + 4, 2), v(vY), s(sY, 4), s(sYO[tt]), off=16)
    def yfinish(self):
        for tt in range(4): self.yfinish1(tt)

    def toggle(self, regs, plus):
        for r in regs:
            if plus: self.valu('v_add_u32', v(r), s(sD), v(r))
            else: self.valu('v_subrev_u32', v(r), s(sD), v(r))

X16BUFS = [R4 + 4 * i for i in range(8)]
NPRE16 = 4
def tail_next(g):
    g.tag = 'next'
    for i in g.bias_reads(): i.tail = 0
    n = 0
    for st in range(NPRE16):
        i = g.x16_read(0, 0, st, X16BUFS[st], L('Xn')); i.tail = LAT_DS - 48 * st

def body():
    g = G()
    g.tag = 'cur'
    g.pack(R3, R3, 24)
    g.mask(0)
    g.vproj(0, R2 + 24, X16BUFS, L('Xc'), skip_reads=NPRE16)
    g.scores()
    g.softmax(0)
    g.softmax(1)
    g.vproj(1, R3 + 24, X16BUFS, L('Xc'))
    g.toggle(vX16, True)
    g.vfinish(0, R2 + 24)
    g.vfinish(1, R3 + 24)
    g.barrier(writes=[L('Xc'), L('Xn'), L('Xd'), L('Op'), L('Oc')], lgkm=None)
    g.tag = 'dma'
    g.x_dma(2 * NWG, s(sXB), [[L('Xd')], [L('Xd')]], True)
    g.salu('s_add_u32', s(sXB), s(sXB), s(sD))
    g.tag = 'prev'
    last = g.outproj([R2 + 4 * i for i in range(6)], [R2 + 24, R2 + 36], L('Op'))
    last.writes.add(('P', 'm6'))
    g.toggle(vOR, False)
    g.y_addr(-NWG)
    g.tag = 'ctl'
    t = g.st()
    g.salu('s_cmp_ge_u32', None, s(sW), NWIN - NWG)
    mk = g.raw('s_cbranch_scc1 L_epi', 'branch', reads=[('scc', 0), ('P', 'm6')], writes=[('P', 'mk')])
    g.tag = 'next'
    n0 = len(g.insts)
    g.qk(0, R2, [R3 + 32 + 4 * i for i in range(4)], L('Xn'))
    [i for i in g.insts[n0:] if i.kind == 'mfma32'][0].reads.add(('P', 'mk'))
    g.tag = 'prev'
    g.yfinish()
    g.tag = 'cur'
    g.pv(0); g.pv(1)
    g.tag = 'next'
    g.pack(R2, R2, 24)
    g.tag = 'cur'
    g.ofinish(0); g.ofinish(1)
    g.toggle([vOW], True)
    g.tag = 'next'
    g.qk(1, R3, [R2 + 24 + 4 * i for i in range(6)], L('Xn'))
    g.toggle(vX32, False)
    tail_next(g)
    g.tag = 'ctl2'
    i = g.salu('s_mov_b32', s(sY + 2), hx(XBYTES)); i.reads.add(('P', 'mk'))
    i = g.salu('s_add_u32', s(sW), s(sW), NWG); i.reads.add(('P', 'mk'))
    i = g.salu('s_sub_u32', s(sD), 0, s(sD)); i.reads.add(('P', 'mk'))
    return g, mk

def prologue():
    g = G()
    g.tag = 'setup'
    head = G()
    head.raw(f's_cmp_ge_u32 s2, {NWG}', 'salu', writes=[('scc', 0)])
    head.raw('s_cbranch_scc1 L_end', 'branch', reads=[('scc', 0)])
    head.raw('s_load_dwordx4 s[48:51], s[0:1], 0', 'smem', nbytes=8)
    head.raw('s_load_dwordx4 s[52:55], s[0:1], 16', 'smem', nbytes=8)
    head.raw('s_load_dwordx2 s[56:57], s[0:1], 48', 'smem', nbytes=8)
    head.valu('v_lshrrev_b32', v(1), 6, v(0))
    head.salu('s_mov_b32', s(sMAG), hx(153391690))
    head.rfl(s(sWV), v(1))
    head.valu('v_and_b32', v(1), 63, v(0))
    head.salu('s_mov_b32', s(sW), s(2))
    head.salu('s_mov_b32', s(sD), 24576)
    head.salu('s_mov_b32', s(sC), hx(f2u(CSC)))
    for base, size in ((sX, XBYTES), (sY, 0), (sWQ, 192 * 576 * 2), (sWO, 192 * 192 * 2), (sRP, 225 * 4 * 2)):
        head.salu('s_mov_b32', s(base + 2), hx(size) if size else 0)
        head.salu('s_mov_b32', s(base + 3), '0x00020000')
    head.salu('s_mul_i32', s(sWVROW), s(sWV), ROWB)
    head.salu('s_mul_i32', s(sXB), s(sWV), 3072)
    head.raw('s_waitcnt lgkmcnt(0)', 'misc')
    for base, src in ((sX, 48), (sWQ, 50), (sWO, 52), (sRP, 54), (sY, 56)):
        head.salu('s_mov_b32', s(base), s(src))
        head.salu('s_mov_b32', s(base + 1), s(src + 1))

    lane = v(1)
    tpool = list(range(R1, R1 + 64)) + list(range(28, 40)) + [44, 45, 46, 47]
    def tv(): return v(tpool.pop(0))
    lpool = list(LL)
    def sl_(): return s(lpool.pop(0))
    w96 = sl_(); g.salu('s_mul_i32', w96, s(sWV), 96)
    par4 = sl_(); g.salu('s_and_b32', par4, s(sWV), 1); g.salu('s_lshl_b32', par4, par4, 2)
    Gk, D6 = [], []
    for k in range(3):
        Gv = tv(); g.valu('v_add_u32', Gv, 64 * k, lane) if k < 2 else g.valu('v_add_u32', Gv, hx(128), lane)
        d6 = tv(); g.valu('v_mul_u32_u24', d6, hx(171), Gv); g.valu('v_lshrrev_b32', d6, 10, d6)
        Gk.append(Gv); D6.append(d6)
        t = tv(); g.valu('v_lshrrev_b32', t, 3, d6)
        g.valu('v_or_b32', t, par4, t)
        g.valu('v_xor_b32', t, t, Gv)
        g.valu('v_lshlrev_b32', v(XC[k]), 4, t)
    g.tag = 'dma'
    g.x_dma(0, s(sXB), [[L('Xn0')], [L('Xn0')]], False)
    g.tag = 'setup'
    RB = [tv() for _ in range(4)]; RE = [tv() for _ in range(4)]
    w2 = sl_(); g.salu('s_lshl_b32', w2, s(sWV), 1)
    for j in range(4):
        g.valu('v_add_u32', RE[j], hx(64 * j) if j > 1 else 64 * j, lane)
        g.valu('v_min_u32', RE[j], hx(224), RE[j])
        g.valu('v_lshlrev_b32', RB[j], 3, RE[j])
        g.bload('buffer_load_ushort', RB[j], RB[j], s(sRP, 4), w2)
    QO, VO, WO_ = [], [], []
    for k in range(3):
        row = tv(); g.valu('v_lshrrev_b32', row, 1, D6[k])
        o = tv()
        g.valu('v_mul_u32_u24', o, hx(960), row)
        g.valu('v_lshl_add_u32', o, Gk[k], 4, o)
        g.valu('v_and_b32', row, 1, D6[k])
        g.valu('v_mul_u32_u24', row, hx(288), row)
        g.valu('v_add3_u32', o, o, row, w96)
        QO.append(o)
    slots = []
    def slot(base, mul):
        r = sl_(); g.salu('s_mul_i32', r, s(sWV), mul); g.salu('s_add_u32', r, r, base); return r
    slots.append(slot(X1, 3072)); slots.append(slot(X1 + 4 * 3072, 3072))
    w0 = slot(WOL, 9216); slots.append(w0)
    for j in (1, 2):
        r = sl_(); g.salu('s_add_u32', r, w0, 3072 * j); slots.append(r)
    o0 = slot(O0, 12288); slots.append(o0)
    for j in (1, 2, 3):
        r = sl_(); g.salu('s_add_u32', r, o0, 3072 * j); slots.append(r)
    slots.append(slot(BIAS, 4352))
    SL = lambda i: [L('Xd')] if False else [L(f'slot{i}')]
    def chunk_dma(voffs, srd, soff, sl, extra=()):
        so = g.st(); g.salu('s_mov_b32', so, hx(soff) if soff > 64 else soff)
        for k in range(3):
            g.salu('s_add_u32', 'm0', slots[sl], k * 1024)
            g.dma(voffs[k], s(srd, 4), so, lds=SL(sl) + list(extra))
    for c in range(10): chunk_dma(QO, sWQ, c * 18432, c)
    for k in range(3):
        rho = D6[k]
        gi16 = tv(); g.valu('v_mul_u32_u24', gi16, 6, rho); g.valu('v_sub_u32', gi16, Gk[k], gi16); g.valu('v_lshl_add_u32', gi16, gi16, 4, w96)
        g1 = tv(); g.valu('v_bfe_u32', g1, rho, 3, 1)
        g2 = tv(); g.valu('v_lshrrev_b32', g2, 4, rho)
        jj = tv(); g.valu('v_and_b32', jj, 7, rho)
        o = tv(); g.valu('v_lshl_add_u32', o, g1, 5, jj); g.valu('v_lshl_add_u32', o, g2, 3, o)
        g.valu('v_mul_u32_u24', o, hx(1152), o); g.valu('v_add_u32', o, o, gi16); g.valu('v_add_u32', o, hx(768), o)
        VO.append(o)
        p = tv(); g.valu('v_and_b32', p, 4, jj); g.valu('v_add_u32', p, p, jj); g.valu('v_lshl_add_u32', p, g1, 2, p)
        g.valu('v_mul_u32_u24', g2, 48, g2); g.valu('v_add_u32', p, p, g2)
        g.valu('v_mul_u32_u24', p, hx(384), p); g.valu('v_add_u32', p, p, gi16)
        WO_.append(p)
    hi = tv(); g.valu('v_lshrrev_b32', hi, 5, lane)
    q = tv(); g.valu('v_and_b32', q, 31, lane)
    g4 = tv(); g.valu('v_lshrrev_b32', g4, 4, lane)
    m16 = tv(); g.valu('v_and_b32', m16, 15, lane)
    rr = tv(); g.valu('v_bfe_u32', rr, lane, 2, 2)
    cc = tv(); g.valu('v_and_b32', cc, 3, lane)
    l7 = tv(); g.valu('v_and_b32', l7, 7, lane)
    t1, t2 = tv(), tv()
    vWQ = tv(); g.valu('v_lshl_add_u32', vWQ, hi, 3, rr); g.valu('v_mul_u32_u24', vWQ, hx(192), vWQ)
    g.valu('v_and_b32', t1, 1, g4); g.valu('v_lshl_add_u32', vWQ, t1, 5, vWQ); g.valu('v_lshl_add_u32', vWQ, cc, 3, vWQ)
    vWV = tv(); g.valu('v_lshl_add_u32', vWV, g4, 3, rr); g.valu('v_mul_u32_u24', vWV, hx(96), vWV)
    g.valu('v_lshl_add_u32', vWV, cc, 3, vWV)
    vWOr = tv(); g.valu('v_lshl_add_u32', vWOr, cc, 4, vWV)
    g.valu('v_add_u32', v(vWOL), slots[2], vWOr)
    g.valu('v_bfe_u32', t2, q, 1, 3); g.valu('v_xor_b32', t2, t2, hi); g.valu('v_lshlrev_b32', t2, 4, t2)
    q384 = tv(); g.valu('v_mul_u32_u24', q384, hx(384), q)
    g.valu('v_add_u32', v(vX32[0]), q384, t2)
    for k in (1, 2, 3): g.valu('v_xor_b32', v(vX32[k]), (k << 5) if (k << 5) <= 64 else hx(k << 5), v(vX32[0]))
    t3, t4 = tv(), tv()
    g.valu('v_and_b32', t3, 1, rr); g.valu('v_lshl_add_u32', t3, t3, 4, cc)
    g.valu('v_lshrrev_b32', t4, 1, rr); g.valu('v_lshl_add_u32', t3, t4, 2, t3)
    g.valu('v_lshl_add_u32', t4, t1, 2, hi)
    t5 = tv(); g.valu('v_bfe_u32', t5, t3, 1, 3); g.valu('v_xor_b32', t4, t4, t5); g.valu('v_lshlrev_b32', t4, 4, t4)
    g.valu('v_mul_u32_u24', t3, hx(384), t3); g.valu('v_add_u32', v(vX16[0]), t3, t4)
    for k in (1, 2, 3): g.valu('v_xor_b32', v(vX16[k]), (k << 5) if (k << 5) <= 64 else hx(k << 5), v(vX16[0]))
    t6 = tv(); g.valu('v_xor_b32', t6, g4, l7); g.valu('v_lshlrev_b32', t6, 4, t6)
    t7 = tv(); g.valu('v_mul_u32_u24', t7, hx(384), m16); g.valu('v_add_u32', t6, t6, t7)
    g.valu('v_add_u32', v(vOR[0]), hx(O1), t6); g.valu('v_xor_b32', v(vOR[1]), 64, v(vOR[0]))
    t8 = tv(); g.valu('v_add_u32', t8, w2, hi); g.valu('v_xor_b32', t8, t8, l7); g.valu('v_lshlrev_b32', t8, 4, t8)
    g.valu('v_add_u32', t8, t8, q384); g.valu('v_add_u32', v(vOW), hx(O0), t8)
    cp = tv(); g.valu('v_lshlrev_b32', cp, 2, hi); g.valu('v_sub_u32', cp, cp, l7); g.valu('v_add_u32', cp, 7, cp)
    t9, t10 = tv(), tv()
    g.valu('v_and_b32', t9, 1, cp); g.valu('v_mul_u32_u24', t9, hx(66 * 16), t9)
    g.valu('v_bfe_u32', t10, cp, 1, 1); g.valu('v_mul_u32_u24', t10, hx(136 * 16), t10); g.valu('v_add_u32', t9, t9, t10)
    g.valu('v_lshrrev_b32', t10, 2, cp); g.valu('v_lshl_add_u32', t9, t10, 4, t9)
    g.valu('v_lshrrev_b32', t10, 3, q); g.valu('v_sub_u32', t10, 3, t10); g.valu('v_lshl_add_u32', t9, t10, 6, t9)
    g.valu('v_add_u32', v(vBI), slots[9], t9)
    g.valu('v_mul_u32_u24', v(YC), hx(384), l7)
    g.valu('v_bfe_u32', t10, lane, 3, 1); g.valu('v_mul_u32_u24', t10, hx(ROWB), t10)
    g.valu('v_mul_u32_u24', v(YR), 24, g4); g.valu('v_add3_u32', v(YR), v(YR), t10, w96)
    t11 = tv(); g.valu('v_bfe_u32', t11, lane, 2, 1); g.valu('v_xor_b32', t11, t11, hi)
    g.valu('v_cvt_f32_u32', t11, t11); g.valu('v_mul_f32', v(vCM), hx(f2u(MVC)), t11)
    g.valu('v_mov_b32', v(vY), 0)

    g.barrier(writes=[L('Xn0'), L('Xn')], lgkm=None)

    TA = [40, 41, 42, 43]
    tan = [0]
    def tr_chunk(basev, sl, dstf, ustride, cstride):
        ad = v(TA[tan[0] % 4]); tan[0] += 1
        g.valu('v_add_u32', ad, slots[sl], basev)
        for c3 in range(3):
            for u in range(2):
                d = dstf(c3)
                g.dsr('ds_read_b64_tr_b16', a(d.n + 2 * u, 2), ad, u * ustride + c3 * cstride, lds=SL(sl))
    vso = lambda st: (64 * (st >> 1) + 16 * (st & 1)) * 1152
    wso = lambda st: (96 * (st & 1) + 16 * (st >> 1)) * 384
    qslot = list(range(10)) + [0, 1]
    vslot = [2, 3, 4, 5, 6, 7]
    wrslot = [8, 5, 6]
    bufs = [R4 + 4 * i for i in range(8)]
    g.tag = 'next'
    for st in range(12):
        tr_chunk(vWQ, qslot[st], lambda c3: aQK(st, c3), 768, 64)
        if st < 2: chunk_dma(QO, sWQ, (10 + st) * 18432, st)
        elif st < 8: chunk_dma(VO, sWQ, vso(st - 2), vslot[st - 2])
        elif st == 8: chunk_dma(WO_, sWO, wso(0), wrslot[0])
        b0, b1 = bufs[(2 * st) % 8], bufs[(2 * st + 1) % 8]
        g.x32_read(0, st, b0, L('Xn')); g.x32_read(1, st, b1, L('Xn'))
        g.qk_step(st, R2, b0); g.qk_step(st, R3, b1)
    xb1 = g.st(); g.salu('s_add_u32', xb1, s(sXB), X1)
    g.x_dma(NWG, xb1, [SL(0) + [L('Xd')], SL(1) + [L('Xd')]], False)
    for j in range(4):
        ir = tv(); g.valu('v_mul_u32_u24', ir, hx(137), RE[j]); g.valu('v_lshrrev_b32', ir, 11, ir)
        g.valu('v_add_u32', ir, ir, RE[j]); g.valu('v_sub_u32', ir, hx(238), ir); g.valu('v_lshlrev_b32', ir, 2, ir)
        g.valu('v_add_u32', ir, slots[9], ir)
        g.valu('v_lshlrev_b32', RB[j], 16, RB[j]); g.valu('v_mul_f32', RB[j], hx(f2u(SQ48)), RB[j])
        for c in range(4):
            g.dsw('ds_write_b32', ir, RB[j], CBASE[c] * 16 - 4 * c, lds=SL(9) + [L('bias')])
    for st in range(6):
        tr_chunk(vWV, vslot[st], lambda c3: aV(st, c3), 384, 32)
        if st < 3: chunk_dma(WO_, sWO, wso(3 + st), 2 + st, extra=[L('wol')])
        elif st < 5: chunk_dma(WO_, sWO, wso(st - 2), wrslot[st - 2])
    for st in range(3):
        tr_chunk(vWOr, wrslot[st], lambda c3: aWO(st, c3), 384, 8)
    g.pack(R2, R2, 24)
    g.toggle(vX32, True)
    tail_next(g)
    return head, g

def epilogue(after_idx):
    g0, _ = body()
    g = G(); g.tn = 20
    for n, i in enumerate(g0.insts):
        if n in after_idx and i.tag in ('cur', 'prev'):
            g.insts.append(i)
    g.tag = 'cur'
    g.barrier(writes=[L('Oc'), L('Of')], lgkm=None)
    g.y_addr(0)
    g.salu('s_mov_b32', s(sY + 2), hx(XBYTES))
    g.outproj_tok([R2 + 4 * i for i in range(8)], R3, L('Of'))
    return g

def build(sched=True, verbose=True):
    head, pro = prologue()
    bod, mk = body()
    P = schedule(pro.insts, verbose, 'prologue') if sched else pro.insts
    if sched:
        B = schedule(bod.insts, verbose, 'body')
    else:
        B = bod.insts
        for n, i in enumerate(B): i.idx = n
    pos = B.index(mk)
    after = {i.idx for i in B[pos + 1:]}
    epi = epilogue(after)
    E = schedule(epi.insts, verbose, 'epilogue') if sched else epi.insts
    back = Inst('s_branch L_loop', 'branch', nbytes=4)
    B = B + [back]
    B1 = B[:pos + 1]
    H = head.insts
    paths = [H + P + B + B + B1 + E, H + P + B + B1 + E]
    waitcnt_pass(paths)
    hazard_pass(paths)
    lines = []
    lines += emit(H) + emit(P)
    lines.append("L_loop:")
    lines += emit(B)
    lines.append("L_epi:")
    lines += emit(E)
    lines.append("L_end:")
    lines.append("    s_endpgm")
    hdr = open(os.path.join(os.path.dirname(__file__), '..', 'cdna_kernels', NAME + '.s.ref')).read().split('\n')
    top = [l for l in hdr if l.startswith(';') and '@launch' not in l]
    out = top + [f"; @launch grid=({NWG},1,1) block=(256,1,1) lds={LDS_TOTAL}",
                 '.amdgcn_target "amdgcn-amd-amdhsa--gfx950"', '.text', f'.globl {NAME}_kernel', '.p2align 8',
                 f'.type {NAME}_kernel,@function', f'{NAME}_kernel:'] + lines + [
        '.section .rodata,"a"', '.p2align 6', f'.amdhsa_kernel {NAME}_kernel',
        '  .amdhsa_next_free_vgpr 512', '  .amdhsa_next_free_sgpr 102', '  .amdhsa_accum_offset 256',
        '  .amdhsa_group_segment_fixed_size 0', '  .amdhsa_kernarg_size 72', '  .amdhsa_user_sgpr_count 2',
        '  .amdhsa_user_sgpr_kernarg_segment_ptr 1', '  .amdhsa_system_sgpr_workgroup_id_x 1', '.end_amdhsa_kernel']
    return "\n".join(out) + "\n"

if __name__ == '__main__':
    sched = '--nosched' not in sys.argv
    outp = [x for x in sys.argv[1:] if not x.startswith('--')]
    path = outp[0] if outp else os.path.join(os.path.dirname(__file__), '..', 'cdna_kernels', NAME + '.s')
    open(path, 'w').write(build(sched))
    print("wrote", path)
```

```python
import re

def V(n, cnt=1): return [('v', n + i) for i in range(cnt)]
def A(n, cnt=1): return [('a', n + i) for i in range(cnt)]
def S(n, cnt=1): return [('s', n + i) for i in range(cnt)]

def rtxt(kind, n, cnt):
    return f"{kind}{n}" if cnt == 1 else f"{kind}[{n}:{n + cnt - 1}]"

class R:
    def __init__(self, kind, n, cnt=1):
        self.kind, self.n, self.cnt = kind, n, cnt
    def regs(self): return [(self.kind, self.n + i) for i in range(self.cnt)]
    def __str__(self): return rtxt(self.kind, self.n, self.cnt)
def v(n, cnt=1): return R('v', n, cnt)
def a(n, cnt=1): return R('a', n, cnt)
def s(n, cnt=1): return R('s', n, cnt)

class Inst:
    __slots__ = ('text', 'kind', 'reads', 'writes', 'tag', 'cost', 'nbytes', 'srcc', 'srcab', 'lds_rd', 'lds_wr',
                 'wait_lgkm', 'wait_vm', 'nops', 'idx', 'prio', 'preds', 'succs', 't', 'tail', 'store_data', 'fixwait', 'note', 'early')
    def __init__(self, text, kind, reads=(), writes=(), tag=None, cost=4, nbytes=8):
        self.text, self.kind = text, kind
        self.reads, self.writes = set(reads), set(writes)
        self.tag, self.cost, self.nbytes = tag, cost, nbytes
        self.srcc = set(); self.srcab = set()
        self.lds_rd = set(); self.lds_wr = set()
        self.wait_lgkm = None; self.wait_vm = None; self.nops = 0
        self.tail = 0
        self.store_data = set()
        self.fixwait = None
        self.note = ''
        self.early = 0
        self.t = None
    def __repr__(self): return self.text

def _ops(*xs):
    rd = []
    for x in xs:
        if isinstance(x, R): rd += x.regs()
        elif isinstance(x, str) and x in ('vcc', 'm0', 'exec', 'scc'): rd.append((x, 0))
    return rd

TRANS = {'v_exp_f32', 'v_rcp_f32', 'v_log_f32', 'v_rsq_f32', 'v_sqrt_f32'}
VOP3 = {'v_fma_f32', 'v_max3_f32', 'v_cvt_pk_bf16_f32', 'v_mul_lo_u32', 'v_mad_u32_u24', 'v_lshl_add_u32', 'v_add3_u32',
        'v_bfe_u32', 'v_and_or_b32', 'v_lshl_or_b32', 'v_add_lshl_u32', 'v_mul_hi_u32', 'v_perm_b32', 'v_accvgpr_write_b32',
        'v_accvgpr_read_b32', 'v_xad_u32', 'v_min3_u32', 'v_bfi_b32'}

class Prog:
    def __init__(self):
        self.insts = []
        self.tag = None
    def add(self, i):
        if i.tag is None: i.tag = self.tag
        self.insts.append(i); return i
    def valu(self, op, dst, *srcs, extra_reads=(), extra_writes=(), mods=''):
        txt = f"{op} {dst}, " + ", ".join(str(x) for x in srcs) + mods
        rd = _ops(*srcs) + list(extra_reads)
        wr = _ops(dst) + list(extra_writes)
        if op in ('v_fmac_f32',): rd += _ops(dst)
        lit = any(isinstance(x, (int,)) and not (-16 <= x <= 64) for x in srcs) or any(isinstance(x, str) and x.startswith('0x') for x in srcs)
        nb = 8 if (op in VOP3 or lit or mods or any(isinstance(x, str) and x.startswith('-') for x in srcs)) else 4
        if op in TRANS: return self.add(Inst(txt, 'trans', rd, wr, cost=8, nbytes=nb))
        return self.add(Inst(txt, 'valu', rd, wr, cost=4, nbytes=nb))
    def swap(self, op, x, y):
        return self.add(Inst(f"{op} {x}, {y}", 'perm', _ops(x, y), _ops(x, y), cost=8, nbytes=4))
    def rfl(self, dst, src):
        return self.add(Inst(f"v_readfirstlane_b32 {dst}, {src}", 'rfl', _ops(src), _ops(dst), cost=4, nbytes=4))
    def salu(self, op, dst, *srcs, scc_w=None, scc_r=False):
        args = ([str(dst)] if dst is not None else []) + [str(x) for x in srcs]
        txt = f"{op} " + ", ".join(args)
        rd = _ops(*srcs); wr = _ops(dst) if dst is not None else []
        if scc_w is None: scc_w = op not in ('s_mov_b32', 's_mov_b64', 's_mul_i32', 's_mul_hi_u32', 's_cselect_b32', 's_movk_i32', 's_getpc_b64')
        if op.startswith('s_cselect') or op in ('s_addc_u32', 's_subb_u32'): scc_r = True
        if scc_w: wr.append(('scc', 0))
        if scc_r: rd.append(('scc', 0))
        lit = any(isinstance(x, int) and not (-16 <= x <= 64) for x in srcs) or any(isinstance(x, str) and x.startswith('0x') for x in srcs)
        return self.add(Inst(txt, 'salu', rd, wr, cost=4, nbytes=8 if lit else 4))
    def mfma(self, big, d, A_, B_, c):
        op = 'v_mfma_f32_32x32x16_bf16' if big else 'v_mfma_f32_16x16x32_bf16'
        i = Inst(f"{op} {d}, {A_}, {B_}, {c}", 'mfma32' if big else 'mfma16', _ops(A_, B_, c), _ops(d), cost=8)
        i.srcc = set(_ops(c)); i.srcab = set(_ops(A_, B_))
        return self.add(i)
    def dsr(self, op, dst, addr, off=0, lds=()):
        assert 0 <= off < 65536, off
        i = Inst(f"{op} {dst}, {addr}" + (f" offset:{off}" if off else ""), 'dsr', _ops(addr) + list(lds), _ops(dst))
        i.lds_rd = set(lds)
        return self.add(i)
    def dsw(self, op, addr, data, off=0, lds=()):
        assert 0 <= off < 65536, off
        i = Inst(f"{op} {addr}, {data}" + (f" offset:{off}" if off else ""), 'dsw', _ops(addr, data), list(lds))
        i.lds_wr = set(lds)
        return self.add(i)
    def dma(self, voff, srd, soff, lds=(), off=0, mod=''):
        i = Inst(f"buffer_load_dwordx4 {voff}, {srd}, {soff} offen" + (f" offset:{off}" if off else "") + mod + " lds", 'dma',
                 _ops(voff, srd, soff, 'm0'), list(lds))
        i.lds_wr = set(lds)
        return self.add(i)
    def bload(self, op, dst, voff, srd, soff, off=0, mod=''):
        return self.add(Inst(f"{op} {dst}, {voff}, {srd}, {soff} offen" + (f" offset:{off}" if off else "") + mod, 'vld',
                             _ops(voff, srd, soff), _ops(dst)))
    def bstore(self, op, data, voff, srd, soff, off=0, mod=''):
        i = Inst(f"{op} {data}, {voff}, {srd}, {soff} offen" + (f" offset:{off}" if off else "") + mod, 'vst',
                 _ops(data, voff, srd, soff), [])
        if data.cnt >= 3: i.store_data = set(data.regs())
        return self.add(i)
    def raw(self, text, kind='misc', reads=(), writes=(), cost=4, nbytes=4):
        return self.add(Inst(text, kind, reads, writes, cost=cost, nbytes=nbytes))
    def barrier(self, reads=(), writes=(), vm=None, lgkm=0):
        i = Inst("s_barrier", 'barrier', reads, writes, cost=4, nbytes=4)
        i.fixwait = (vm, lgkm)
        return self.add(i)
    def label(self, name):
        return self.add(Inst(f"{name}:", 'label', cost=0, nbytes=0))

ISMFMA = ('mfma32', 'mfma16')
ISVALU = ('valu', 'trans', 'perm', 'rfl')
MEMK = ('dsr', 'dsw', 'dma', 'vld', 'vst')

LAT_DS = 150
LAT_VM = 1500

def dep_latency(p, c, reg, kind):
    if kind == 'raw':
        if p.kind in ISMFMA:
            big = p.kind == 'mfma32'
            if c.kind == p.kind and reg in c.srcc and c.srcc == p.writes: return 32 if big else 16
            return 84 if big else 52
        if p.kind == 'dsr': return LAT_DS
        if p.kind in ('vld', 'dma'): return LAT_VM
        if p.kind == 'dsw': return 64
        if p.kind in ISVALU:
            if c.kind in ISMFMA or c.kind == 'perm': return p.cost + 8
            if p.kind == 'trans': return p.cost + 4
            if reg[0] == 's': return p.cost + 20
            return p.cost
        return p.cost
    if kind == 'waw':
        if p.kind in ISMFMA:
            if c.kind == p.kind and c.srcc == p.writes: return 32 if p.kind == 'mfma32' else 16
            return 84 if p.kind == 'mfma32' else 52
        if p.kind == 'dma' and c.kind == 'dma': return 4
        if p.kind == 'dsr': return LAT_DS
        if p.kind in ('vld', 'dma'): return LAT_VM
        return p.cost
    if p.kind in ISMFMA and reg in p.srcc and c.kind in ISVALU: return 40
    if p.kind == 'dsr' and reg in p.lds_rd: return LAT_DS
    if p.kind == 'vst' and reg in p.store_data: return p.cost + 8
    return p.cost

def build_dag(insts):
    lastw = {}; readers = {}
    last_mfma = None
    lastk = {}
    for n, i in enumerate(insts):
        i.idx = n; i.preds = {}; i.succs = []
    def edge(p, c, lat):
        if p is c: return
        if c.preds.get(p, -1) < lat: c.preds[p] = lat
    for i in insts:
        for r in i.reads:
            if r in lastw: edge(lastw[r], i, dep_latency(lastw[r], i, r, 'raw'))
        for r in i.writes:
            if r in lastw: edge(lastw[r], i, dep_latency(lastw[r], i, r, 'waw'))
            for p in readers.get(r, ()): edge(p, i, dep_latency(p, i, r, 'war'))
        for r in i.reads: readers.setdefault(r, []).append(i)
        for r in i.writes: lastw[r] = i; readers[r] = []
        if i.kind in ISMFMA:
            if last_mfma is not None: edge(last_mfma, i, 32 if last_mfma.kind == 'mfma32' else 16)
            last_mfma = i
        if i.kind in ('dma', 'vld', 'vst'):
            if 'vm' in lastk: edge(lastk['vm'], i, 4)
            lastk['vm'] = i
    for i in insts:
        for p in i.preds: p.succs.append(i)

SCALARK = ('salu', 'branch', 'barrier', 'misc')
def lds_occ(i):
    if i.kind == 'dsr': return 16 if 'b128' in i.text else 8
    if 'b128' in i.text: return 52
    if 'b64' in i.text: return 26
    return 16

def schedule(insts, verbose=False, name='', vm_gap=72):
    build_dag(insts)
    for i in reversed(insts):
        best = i.cost + i.tail
        if i.kind in ISMFMA: best = max(best, 32 if i.kind == 'mfma32' else 16)
        for c in i.succs: best = max(best, c.preds[i] + c.prio)
        i.prio = best + i.early
    npred = {i: len(i.preds) for i in insts}
    ready_t = {i: 0 for i in insts}
    avail = [i for i in insts if npred[i] == 0]
    out = []; t = 0
    ft = 0.0
    lds_free = 0; vm_free = 0
    prev = None
    def rdy(i):
        r = ready_t[i]
        if i.kind in ('dsr', 'dsw'): r = max(r, lds_free - 32)
        if i.kind in ('dma', 'vld', 'vst'): r = max(r, vm_free)
        return r
    def cost(i):
        if i.kind in SCALARK and prev is not None and prev.kind in ISMFMA and prev.t + 8 == t: return 0
        c = i.cost
        if i.kind in MEMK and prev is not None and prev.kind == 'trans' and prev.t + 8 == t: c += 8
        return c
    def fin(i):
        f = max(ft, t - 10) + i.nbytes * 0.625
        return max(t + cost(i), f - 10 + 0)
    while avail:
        mf = [i for i in avail if i.kind in ISMFMA]
        tm = min((ready_t[i] for i in mf), default=None)
        cands = [i for i in avail if rdy(i) <= t]
        pick = None
        if cands:
            m = [i for i in cands if i.kind in ISMFMA]
            others = [i for i in cands if i.kind not in ISMFMA]
            free = [i for i in others if cost(i) == 0]
            key = lambda i: (i.prio - (12 if cost(i) > i.cost else 0), -i.idx)
            if free:
                pick = max(free, key=key)
            elif m:
                mm = m[0]
                hot = [i for i in others if i.prio > mm.prio + 16]
                pick = max(hot, key=key) if hot else mm
            elif tm is not None:
                fit = [i for i in others if fin(i) <= tm]
                mprio = mf[0].prio
                hot = [i for i in others if i.prio > mprio + (tm - t) + 8]
                fit = [i for i in fit if i.kind not in SCALARK or i.prio > mprio - 64]
                pool = fit + [i for i in hot if i not in fit]
                if pool: pick = max(pool, key=key)
            else:
                pick = max(others, key=key)
        if pick is None:
            fut = [rdy(i) for i in avail if rdy(i) > t]
            t = min(fut)
            continue
        c = cost(pick)
        tn = fin(pick)
        ft = max(ft, t - 10) + pick.nbytes * 0.625
        pick.t = t
        extra = 0
        if pick.kind in ('dsr', 'dsw'):
            st = max(lds_free, t); extra = st - t
            lds_free = st + lds_occ(pick)
        if pick.kind in ('dma', 'vld', 'vst'): vm_free = t + vm_gap
        out.append(pick); avail.remove(pick)
        t = int(-(-tn // 1))
        if c != 0 or pick.kind in ISMFMA: prev = pick
        else: prev = None
        for sc in pick.succs:
            lat = sc.preds[pick]
            if lat >= 64 and extra: lat += extra
            rt = pick.t + lat
            if rt > ready_t[sc]: ready_t[sc] = rt
            npred[sc] -= 1
            if npred[sc] == 0: avail.append(sc)
    assert len(out) == len(insts)
    last = out[-1]
    total = max(t, max((i.t + (32 if i.kind == 'mfma32' else 16) for i in out if i.kind in ISMFMA), default=0))
    if verbose:
        nm = sum(32 for i in out if i.kind == 'mfma32') + sum(16 for i in out if i.kind == 'mfma16')
        print(f"[sched {name}] {len(out)} insts, est {total} cycles, mfma busy {nm}, bytes {sum(i.nbytes for i in out)}")
    return out

def path_times(path):
    ts = []; base = 0; last = None
    for i in path:
        t = getattr(i, 't', None)
        if t is None: t = (last + 4) if last is not None else 0
        if last is not None and t < last: base += last + 8 - t
        ts.append(base + t); last = t
    return ts

SAFE_DS = 112
def waitcnt_pass(paths, hoist=True):
    changed = True
    while changed:
        changed = False
        for path in paths:
            ts = path_times(path)
            ds = []
            vm = []
            restart = False
            for n, i in enumerate(path):
                if i.wait_lgkm is not None and len(ds) > i.wait_lgkm: ds = ds[len(ds) - i.wait_lgkm:] if i.wait_lgkm else []
                if i.wait_vm is not None and len(vm) > i.wait_vm: vm = vm[len(vm) - i.wait_vm:] if i.wait_vm else []
                need_l = None; need_v = None
                touched = i.reads | i.writes
                for k, on in enumerate(ds):
                    o = path[on]
                    hit = False
                    if o.kind == 'dsr':
                        if (o.writes & touched) or (o.lds_rd & i.writes and i.kind not in ('dsw',)): hit = True
                    else:
                        if o.lds_wr & touched and i.kind not in ('dsr', 'dsw'): hit = True
                    if hit: need_l = k
                for k, on in enumerate(vm):
                    o = path[on]
                    if o.kind in ('vld', 'dma') and (o.writes & touched) and not (o.kind == 'dma' and i.kind == 'dma'):
                        need_v = len(vm) - 1 - k
                if i.fixwait is not None:
                    fv, fl = i.fixwait
                    if fl is not None and len(ds) > fl: need_l = max(need_l if need_l is not None else -1, len(ds) - fl - 1)
                    if fv is not None and len(vm) > fv: need_v = fv if need_v is None else min(need_v, fv)
                if need_l is not None:
                    host = n
                    if hoist and i.kind != 'barrier':
                        j = n
                        while j > 0 and j > ds[need_l] + 0 and n - j < 10:
                            pj = path[j - 1]
                            if pj.kind in ('label', 'branch', 'barrier'): break
                            if pj.kind in ISMFMA:
                                if path[j].kind not in SCALARK and ds[need_l] < j: host = j
                                break
                            j -= 1
                    k = need_l
                    while k + 1 < len(ds) and ds[k + 1] < host and ts[host] - ts[ds[k + 1]] >= SAFE_DS: k += 1
                    cnt = sum(1 for on in ds[k + 1:] if on < host)
                    cnt = min(cnt, 15)
                    h = path[host]
                    if h.wait_lgkm is None or cnt < h.wait_lgkm:
                        h.wait_lgkm = cnt; changed = True
                    else:
                        raise AssertionError("waitcnt logic")
                    keep_old = [on for on in ds if on < host]
                    keep_new = [on for on in ds if on >= host]
                    ds = (keep_old[len(keep_old) - cnt:] if cnt else []) + keep_new
                if need_v is not None:
                    need_v = min(need_v, 63)
                    if i.wait_vm is None or need_v < i.wait_vm: i.wait_vm = need_v; changed = True
                    vm = vm[len(vm) - need_v:] if need_v else []
                if i.kind in ('dsr', 'dsw'): ds.append(n)
                if i.kind in ('vld', 'dma', 'vst'): vm.append(n)
                assert len(vm) <= 63, "too many vmem ops outstanding"

def required_ws(p, c):
    need = 0
    pv = p.kind in ISVALU; cv = c.kind in ISVALU
    vw = {r for r in p.writes if r[0] in 'va'}
    if pv:
        if c.kind in ISMFMA and (vw & c.reads): need = max(need, 2)
        if c.kind == 'perm' and (vw & c.reads): need = max(need, 2)
        if c.kind == 'rfl' and (vw & c.reads): need = max(need, 1)
        if p.kind == 'trans' and cv and c.kind != 'trans' and (vw & c.reads): need = max(need, 1)
        sw = {r for r in p.writes if r[0] in ('s', 'vcc')}
        if sw & c.reads:
            if c.kind in ('dma', 'vld', 'vst'): need = max(need, 5)
            elif cv: need = max(need, 2)
            elif c.kind == 'salu' or c.kind == 'misc': need = max(need, 2)
    if p.kind in ISMFMA:
        big = p.kind == 'mfma32'
        if c.kind in ISMFMA:
            if p.writes & c.srcab: need = max(need, 12 if big else 8)
            if p.writes & c.srcc:
                if not (c.kind == p.kind and c.srcc == p.writes): need = max(need, 10 if big else 6)
            elif p.writes & c.writes: need = max(need, 10 if big else 6)
        else:
            if p.writes & (c.reads | c.writes): need = max(need, 12 if big else 8)
            if cv and (p.srcc & c.writes): need = max(need, 7 if big else 3)
    if p.kind == 'vst' and p.store_data & c.writes: need = max(need, 2)
    if p.kind == 'salu' and ('m0', 0) in p.writes and c.kind == 'dma': need = max(need, 1)
    return need

def hazard_pass(paths):
    changed = True
    while changed:
        changed = False
        for path in paths:
            real = [i for i in path if i.kind != 'label']
            for n, c in enumerate(real):
                dist = c.nops + (1 if (c.wait_lgkm is not None or c.wait_vm is not None) else 0)
                k = n - 1
                while k >= 0 and dist < 12:
                    p = real[k]
                    need = required_ws(p, c)
                    if need > dist:
                        c.nops += need - dist; dist = need; changed = True
                    dist += 1 + p.nops + (1 if (p.wait_lgkm is not None or p.wait_vm is not None) else 0)
                    k -= 1

def emit(insts):
    out = []
    for i in insts:
        if i.kind == 'label':
            out.append(i.text); continue
        n = i.nops
        while n > 0:
            k = min(n, 16); out.append(f"    s_nop {k - 1}"); n -= k
        if i.wait_lgkm is not None or i.wait_vm is not None:
            w = []
            if i.wait_vm is not None: w.append(f"vmcnt({i.wait_vm})")
            if i.wait_lgkm is not None: w.append(f"lgkmcnt({i.wait_lgkm})")
            out.append("    s_waitcnt " + " ".join(w))
        out.append("    " + i.text + (f"    ; {i.note}" if i.note else ""))
    return out
```

```python
import sys, math, struct, os
sys.path.insert(0, os.path.dirname(__file__))
from asmlib import *

NAME = "standalone__window_attn_swin__vision"
NWIN = 784
NWG = 256
ROWB = 86016
XBYTES = 19267584

def f2u(x): return struct.unpack('<I', struct.pack('<f', x))[0]
def hx(x): return f"0x{x & 0xffffffff:08x}"
def im(x): return x if -16 <= x <= 64 else hx(x)

LOG2E = math.log2(math.e)
CSC = LOG2E / math.sqrt(48.0)
MVC = -100.0 * LOG2E
SQ48 = math.sqrt(48.0)

X0, X1 = 0, 24576
OB, YB = 49152, 73728
WOL = 98304
BIAS = 135680
LDS_TOTAL = BIAS + 4 * 4352
CBASE = [0, 66, 136, 202]
SPART = 9248
SBUF = [24576, 24576 + 4 * SPART, 24576 + 8 * SPART]
assert SBUF[2] + 4 * SPART <= BIAS

vX32 = [2, 3, 4, 5]; vX16 = [6, 7]; vYW = [8, 9]; vOR = [10, 11]; vOW = 12; vBI = 13; vWOL = [14, 18]
XC = [15, 16, 17]; vYR = 19; vCM = 20
DV = [21, 22, 23]; DT = 24; vMs = 26; vMd = 27
SMX = [[28, 29, 30, 31, 32], [33, 34, 35, 36, 37]]
RCP = [38, 39]
YV = [40, 41, 42]; YT = 25
vWR = [43, 44]
R1, R2, R3, R4 = 48, 112, 160, 208
def aQK(st, T): return a((st * 3 + T) * 4, 4)
def aV(st, dt): return a(144 + (st * 3 + dt) * 4, 4)
def aWO(st, et): return a(216 + (st * 3 + et) * 4, 4)
sX, sY, sWQ, sWO, sRP = 4, 8, 12, 16, 20
sWV = 24; sW = 25; sD = 26; sC = 27; sYO = [28, 29]; sXO = [32, 33]
sXB = 40; sMAG = 41; sRow = 42; sCol = 43; sWVROW = 44
T = list(range(84, 100))
LL = list(range(58, 84))

L = lambda n: ('L', n)

class G(Prog):
    def __init__(self):
        super().__init__()
        self.tn = 0
    def st(self):
        r = T[self.tn % len(T)]; self.tn += 1
        return s(r)

    def coords(self, w):
        wh, t, ww = self.st(), self.st(), self.st()
        self.salu('s_mul_hi_u32', wh, w, s(sMAG))
        self.salu('s_mul_i32', t, wh, 28)
        self.salu('s_sub_u32', ww, w, t)
        return wh, ww

    def win_addr(self, delta, so, dv, dt, check=False):
        if delta:
            w = self.st()
            self.salu('s_add_u32', w, s(sW), delta)
        else:
            w = s(sW)
        if check:
            self.salu('s_cmp_lt_u32', None, w, NWIN)
            self.salu('s_cselect_b32', s(sX + 2), hx(XBYTES), 0)
        wh, ww = self.coords(w)
        t = self.st()
        self.salu('s_mul_i32', t, wh, 8 * ROWB)
        self.salu('s_add_u32', t, t, s(sWVROW))
        self.salu('s_add_u32', s(so[0]), t, 4 * ROWB)
        self.salu('s_add_u32', t, t, 8 * ROWB)
        self.salu('s_cmp_eq_u32', None, wh, 27)
        self.salu('s_cselect_b32', s(so[1]), s(sWVROW), t)
        col = self.st()
        self.salu('s_mul_i32', col, ww, 3072)
        self.salu('s_add_u32', col, col, 1536)
        for k in range(3):
            self.valu('v_add_u32', v(dv[k]), col, v(XC[k]))
            if k > 0:
                self.valu('v_subrev_u32', v(dt), hx(ROWB), v(dv[k]))
                self.valu('v_min_u32', v(dv[k]), v(dv[k]), v(dt))

    def x_dma(self, delta, xb, lds, check):
        self.win_addr(delta, sXO, DV, DT, check)
        for r in range(2):
            for k in range(3):
                self.salu('s_add_u32', 'm0', xb, r * 4 * 3072 + k * 1024)
                self.dma(v(DV[k]), s(sX, 4), s(sXO[r]), lds=lds)

    def mask(self):
        wh, ww = self.coords(s(sW))
        self.salu('s_cmp_eq_u32', None, wh, 27)
        self.salu('s_cselect_b32', s(sRow), hx(f2u(MVC)), 0)
        self.salu('s_cmp_eq_u32', None, ww, 27)
        self.salu('s_cselect_b32', s(sCol), '1.0', 0)
        self.valu('v_mul_f32', v(vMs), s(sCol), v(vCM))
        self.valu('v_min_f32', v(vMd), s(sRow), v(vMs))

    def pack(self, dst, src, n):
        for k in range(n):
            self.valu('v_cvt_pk_bf16_f32', v(dst + k), v(src + 2 * k), v(src + 2 * k + 1))

    def x32_read(self, tt, st, buf, lds):
        return self.dsr('ds_read_b128', v(buf, 4), v(vX32[st & 3]), tt * 12288 + (st >> 2) * 128, lds=[lds])
    def qk_step(self, st, acc, buf):
        for Tt in range(3):
            d = v(acc + 16 * Tt, 16)
            self.mfma(True, d, aQK(st, Tt), v(buf, 4), d if st else 0)
    def qk(self, tt, acc, bufs, lds):
        for st in range(12):
            b = bufs[st % len(bufs)]
            self.x32_read(tt, st, b, lds)
            self.qk_step(st, acc, b)

    def x16_read(self, kt, u, st, buf, lds):
        return self.dsr('ds_read_b128', v(buf, 4), v(vX16[st & 1]), kt * 12288 + u * 6144 + (st >> 1) * 128, lds=[lds])
    def vproj(self, kt, acc, bufs, lds, skip_reads=0):
        n = 0
        for u in range(2):
            for st in range(6):
                b = bufs[(n + 12 * kt) % len(bufs)]
                if n >= skip_reads: self.x16_read(kt, u, st, b, lds)
                n += 1
                for dt in range(3):
                    d = v(acc + 8 * dt + 4 * u, 4)
                    self.mfma(False, d, v(b, 4), aV(st, dt), d if st else 0)
    def vfinish(self, kt, acc):
        blk = R3 + 16 * kt
        self.pack(blk, acc, 12)
        for i in range(4): self.valu('v_mov_b32', v(blk + 12 + i), '0x3f803f80')
        for i in range(4): self.swap('v_permlane16_swap_b32', v(blk + i), v(blk + 4 + i))
        for i in range(4): self.swap('v_permlane16_swap_b32', v(blk + 8 + i), v(blk + 12 + i))

    def bias_reads(self):
        out = []
        for qt in range(2):
            for kt in range(2):
                for a4 in range(4):
                    u = 4 * (qt - kt) - a4
                    out.append(self.dsr('ds_read_b128', v(R1 + 16 * (2 * qt + kt) + 4 * a4, 4), v(vBI), (4 - u) * 64, lds=[L('bias')]))
        return out

    def scores(self):
        base = [R2, R3]
        for qt in range(2):
            for kt in range(2):
                d = v(R1 + 16 * (2 * qt + kt), 16)
                for j in range(3):
                    self.mfma(True, d, v(base[kt] + 12 + 4 * j, 4), v(base[qt] + 4 * j, 4), d)

    def softmax(self, qt):
        mA, mB, tmp, o0, o1 = SMX[qt]
        M = [vMs if kt == qt else vMd for kt in range(2)]
        for kt, m in ((0, mA), (1, mB)):
            b = R1 + 16 * (2 * qt + kt)
            self.valu('v_max3_f32', v(m), v(b), v(b + 1), v(b + 2))
            for k in range(6):
                self.valu('v_max3_f32', v(m), v(m), v(b + 3 + 2 * k), v(b + 4 + 2 * k))
            self.valu('v_max_f32', v(m), v(m), v(b + 15))
            self.valu('v_fma_f32', v(m), v(m), s(sC), v(M[kt]))
        self.valu('v_max_f32', v(mA), v(mA), v(mB))
        self.valu('v_mov_b32', v(tmp), v(mA))
        self.swap('v_permlane32_swap_b32', v(mA), v(tmp))
        self.valu('v_max_f32', v(mA), v(mA), v(tmp))
        self.valu('v_sub_f32', v(o0), v(M[0]), v(mA))
        self.valu('v_sub_f32', v(o1), v(M[1]), v(mA))
        dmap = [0, 1, 4, 5, 2, 3, 6, 7]
        for kt, o in ((0, o0), (1, o1)):
            ti = 2 * qt + kt
            b = R1 + 16 * ti
            for k in range(8):
                for e in range(2):
                    r = b + 2 * k + e
                    self.valu('v_fma_f32', v(r), v(r), s(sC), v(o))
                    self.valu('v_exp_f32', v(r), v(r))
                self.valu('v_cvt_pk_bf16_f32', v(R1 + 8 * ti + dmap[k]), v(b + 2 * k), v(b + 2 * k + 1))

    OACC = [[R4, R4 + 16], [R4 + 32, R1 + 32]]
    def pv(self, qt):
        first = True
        for kt in range(2):
            for half in range(2):
                B = v(R1 + 8 * (2 * qt + kt) + 4 * half, 4)
                for tile in range(2):
                    d = v(self.OACC[qt][tile], 16)
                    Aop = v(R3 + 16 * kt + 8 * tile + 4 * half, 4)
                    self.mfma(True, d, Aop, B, 0 if first else d)
                first = False
    def ofinish(self, qt):
        t0, t1 = self.OACC[qt]
        self.valu('v_rcp_f32', v(RCP[qt]), v(t1 + 8))
        for z in range(3):
            src = (t0, t0 + 8, t1)[z]
            dst = (t0, t0 + 4, t1)[z]
            for k in range(4):
                self.valu('v_mul_f32', v(src + 2 * k), v(RCP[qt]), v(src + 2 * k))
                self.valu('v_mul_f32', v(src + 2 * k + 1), v(RCP[qt]), v(src + 2 * k + 1))
                self.valu('v_cvt_pk_bf16_f32', v(dst + k), v(src + 2 * k), v(src + 2 * k + 1))
            self.dsw('ds_write_b128', v(vOW), v(dst, 4), qt * 12288 + z * 128, lds=[L('O')])

    def wo_reads(self, addr, off, dstf, lds):
        for et in range(3):
            for u in range(2):
                d = dstf(et)
                self.dsr('ds_read_b64_tr_b16', R(d.kind, d.n + 2 * u, 2), v(addr[et >> 1]), off + u * 384 + (8 * et if et < 2 else 64), lds=lds)
    def wol_reads(self, st, base):
        self.wo_reads(vWOL, (st - 3) * 3072, lambda et: v(base + 4 * et, 4), [L('wol')])
    def outproj(self, obufs, wbufs):
        n = 0
        last = None
        for st in range(6):
            if st >= 3:
                wb = wbufs[(st - 3) % len(wbufs)]
                self.wol_reads(st, wb)
            for tt in range(4):
                b = obufs[n % len(obufs)]; n += 1
                self.dsr('ds_read_b128', v(b, 4), v(vOR[st & 1]), tt * 6144 + (st >> 1) * 128, lds=[L('O')])
                for et in range(3):
                    d = v(R4 + 12 * tt + 4 * et, 4)
                    Aop = aWO(st, et) if st < 3 else v(wb + 4 * et, 4)
                    last = self.mfma(False, d, Aop, v(b, 4), d if st else 0)
        return last
    def outproj_tok(self, obufs, wbase):
        for st in range(3, 6): self.wol_reads(st, wbase + 12 * (st - 3))
        n = 0
        for tt in range(4):
            for st in range(6):
                b = obufs[n % len(obufs)]; n += 1
                self.dsr('ds_read_b128', v(b, 4), v(vOR[st & 1]), tt * 6144 + (st >> 1) * 128, lds=[L('O')])
                for et in range(3):
                    d = v(R4 + 12 * tt + 4 * et, 4)
                    Aop = aWO(st, et) if st < 3 else v(wbase + 12 * (st - 3) + 4 * et, 4)
                    self.mfma(False, d, Aop, v(b, 4), d if st else 0)
            self.ywrite1(tt)
    def ywrite1(self, tt):
        b = R4 + 12 * tt
        self.pack(b, b, 6)
        self.dsw('ds_write_b128', v(vYW[0]), v(b, 4), tt * 6144, lds=[L('Y')])
        self.dsw('ds_write_b64', v(vYW[1]), v(b + 4, 2), tt * 6144, lds=[L('Y')])
    def ywrite(self):
        for tt in range(4): self.ywrite1(tt)
    def ystore(self, base):
        n = 0
        for r in range(2):
            for k in range(3):
                b = v(base + 4 * n, 4); n += 1
                self.dsr('ds_read_b128', b, v(vYR), r * 4 * 3072 + k * 1024, lds=[L('Y')])
                self.bstore('buffer_store_dwordx4', b, v(YV[k]), s(sY, 4), s(sYO[r]))

    def toggle(self, regs, plus):
        for r in regs:
            if plus: self.valu('v_add_u32', v(r), s(sD), v(r))
            else: self.valu('v_subrev_u32', v(r), s(sD), v(r))

X16BUFS = [R4 + 4 * i for i in range(8)]
NPRE16 = 4
def tail_next(g):
    g.tag = 'next'
    for i in g.bias_reads(): i.tail = 0
    for st in range(NPRE16):
        i = g.x16_read(0, 0, st, X16BUFS[st], L('Xn')); i.tail = LAT_DS - 48 * st

def body():
    g = G()
    g.tag = 'cur'
    g.pack(R3, R3, 24)
    g.mask()
    g.vproj(0, R2 + 24, X16BUFS, L('Xc'), skip_reads=NPRE16)
    g.scores()
    g.softmax(0)
    g.softmax(1)
    g.vproj(1, R3 + 24, X16BUFS, L('Xc'))
    g.toggle(vX16, True)
    g.vfinish(0, R2 + 24)
    g.vfinish(1, R3 + 24)
    alpha = g.barrier(writes=[L('Xc'), L('Xn'), L('Xd'), L('O'), L('Y')], lgkm=None)
    g.tag = 'dma'
    g.x_dma(2 * NWG, s(sXB), [L('Xd')], True)
    g.salu('s_add_u32', s(sXB), s(sXB), s(sD))
    g.tag = 'prev'
    last = g.outproj([R2 + 4 * i for i in range(6)], [R2 + 24, R2 + 36])
    last.writes.add(('P', 'm6'))
    g.win_addr(-NWG, sYO, YV, YT)
    g.tag = 'ctl'
    g.salu('s_cmp_ge_u32', None, s(sW), NWIN - NWG)
    mk = g.raw('s_cbranch_scc1 L_epi', 'branch', reads=[('scc', 0), ('P', 'm6')], writes=[('P', 'mk')])
    g.tag = 'next'
    n0 = len(g.insts)
    g.qk(0, R2, [R3 + 32 + 4 * i for i in range(4)], L('Xn'))
    [i for i in g.insts[n0:] if i.kind == 'mfma32'][0].reads.add(('P', 'mk'))
    g.tag = 'prev'
    g.ywrite()
    g.tag = 'cur'
    g.pv(0); g.pv(1)
    b = g.barrier(writes=[L('O'), L('Y')], lgkm=None); b.reads.add(('P', 'mk'))
    g.tag = 'prev'
    g.ystore(R1)
    g.tag = 'next'
    g.pack(R2, R2, 24)
    g.tag = 'cur'
    g.ofinish(0); g.ofinish(1)
    g.tag = 'next'
    g.qk(1, R3, [R2 + 24 + 4 * i for i in range(6)], L('Xn'))
    g.toggle(vX32, False)
    tail_next(g)
    g.tag = 'ctl2'
    i = g.salu('s_mov_b32', s(sY + 2), hx(XBYTES)); i.reads.add(('P', 'mk'))
    i = g.salu('s_add_u32', s(sW), s(sW), NWG); i.reads.add(('P', 'mk'))
    i = g.salu('s_sub_u32', s(sD), 0, s(sD)); i.reads.add(('P', 'mk'))
    return g, mk, alpha

def first_block():
    g = G()
    for st in range(3):
        g.wo_reads(vWR, st * 3072, lambda et: aWO(st, et), [L('wr')])
    i = g.salu('s_mov_b64', 'vcc', 0); i.fixwait = (None, 0)
    g.raw('s_branch L_back', 'branch')
    return g

def prologue(prefetch=True):
    g = G()
    g.tag = 'setup'
    head = G()
    head.raw(f's_cmp_ge_u32 s2, {NWG}', 'salu', writes=[('scc', 0)])
    head.raw('s_cbranch_scc1 L_end', 'branch', reads=[('scc', 0)])
    head.raw('s_load_dwordx4 s[48:51], s[0:1], 0', 'smem', nbytes=8)
    head.raw('s_load_dwordx4 s[52:55], s[0:1], 16', 'smem', nbytes=8)
    head.raw('s_load_dwordx2 s[56:57], s[0:1], 48', 'smem', nbytes=8)
    head.valu('v_lshrrev_b32', v(1), 6, v(0))
    head.salu('s_mov_b32', s(sMAG), hx(153391690))
    head.rfl(s(sWV), v(1))
    if prefetch:
        head.raw('s_getpc_b64 s[34:35]', 'salu', writes=S(34, 2))
        head.valu('v_lshlrev_b32', v(45), 7, v(0))
        head.valu('v_min_u32', v(45), 'CODE_LIM', v(45))
        head.raw('global_load_dword v45, v45, s[34:35]', 'vld', reads=V(45) + S(34, 2), writes=V(45), nbytes=8)
    head.valu('v_and_b32', v(1), 63, v(0))
    head.salu('s_mov_b32', s(sW), s(2))
    head.salu('s_mov_b32', s(sD), 24576)
    head.salu('s_mov_b32', s(sC), hx(f2u(CSC)))
    head.salu('s_mov_b64', 'vcc', -1)
    for base, size in ((sX, XBYTES), (sY, 0), (sWQ, 192 * 576 * 2), (sWO, 192 * 192 * 2), (sRP, 225 * 4 * 2)):
        head.salu('s_mov_b32', s(base + 2), hx(size) if size else 0)
        head.salu('s_mov_b32', s(base + 3), '0x00020000')
    head.salu('s_mul_i32', s(sWVROW), s(sWV), ROWB)
    head.salu('s_mul_i32', s(sXB), s(sWV), 3072)

    lane = v(1)
    tpool = list(range(R1, R1 + 64)) + list(range(28, 40))
    def tv(): return v(tpool.pop(0))
    lpool = list(LL)
    def sl_(): return s(lpool.pop(0))
    h = head
    par4 = sl_(); h.salu('s_and_b32', par4, s(sWV), 1); h.salu('s_lshl_b32', par4, par4, 2)
    Gk, D6 = [], []
    for k in range(3):
        Gv = tv(); h.valu('v_add_u32', Gv, im(64 * k), lane)
        d6 = tv(); h.valu('v_mul_u32_u24', d6, hx(171), Gv); h.valu('v_lshrrev_b32', d6, 10, d6)
        Gk.append(Gv); D6.append(d6)
        t = tv(); h.valu('v_lshrrev_b32', t, 3, d6)
        h.valu('v_or_b32', t, par4, t)
        h.valu('v_xor_b32', t, t, Gv)
        h.valu('v_lshlrev_b32', v(XC[k]), 4, t)
    h.win_addr(0, sXO, DV, DT)
    l16 = tv(); h.valu('v_lshlrev_b32', l16, 4, lane)
    head.raw('s_waitcnt lgkmcnt(0)', 'misc')
    for base, src in ((sX, 48), (sWQ, 50), (sWO, 52), (sRP, 54), (sY, 56)):
        head.salu('s_mov_b64', s(base, 2), s(src, 2))

    g.tag = 'dma'
    for r in range(2):
        for k in range(3):
            g.salu('s_add_u32', 'm0', s(sXB), r * 4 * 3072 + k * 1024)
            g.dma(v(DV[k]), s(sX, 4), s(sXO[r]), lds=[L('Xn0')])
    g.tag = 'setup'
    w96 = sl_(); g.salu('s_mul_i32', w96, s(sWV), 96)
    w2 = sl_(); g.salu('s_lshl_b32', w2, s(sWV), 1)
    if prefetch:
        sl = sl_(); g.salu('s_lshr_b32', sl, s(2), 3)
        pf = tv(); g.valu('v_lshlrev_b32', pf, 7, v(0))
        so1 = g.st(); g.salu('s_mul_i32', so1, sl, 54 * 128)
        so2 = g.st(); g.salu('s_mul_i32', so2, sl, 18 * 128)
        p1, p2 = tv(), tv()
        g.valu('v_min_u32', p1, hx(53 * 128), pf); g.valu('v_min_u32', p2, hx(17 * 128), pf)
        g.bload('buffer_load_dword', p1, p1, s(sWQ, 4), so1)
        g.bload('buffer_load_dword', p2, p2, s(sWO, 4), so2)
    wpart = sl_(); g.salu('s_mul_i32', wpart, s(sWV), SPART)
    wsrc = sl_(); g.salu('s_mul_i32', wsrc, s(sWV), 9216)
    def group_dma(p):
        b = p % 3
        for j in range(3):
            so = g.st(); g.salu('s_add_u32', so, wsrc, p * 36864 + j * 3072)
            g.salu('s_add_u32', 'm0', wpart, SBUF[b] + j * 3072)
            for k in range(3):
                g.dma(l16, s(sWQ, 4), so, lds=[L(f'Sd{b}')], off=k * 1024)
    for p in range(3): group_dma(p)
    RB = [tv() for _ in range(4)]; RE = [tv() for _ in range(4)]
    for j in range(4):
        g.valu('v_add_u32', RE[j], im(64 * j), lane)
        g.valu('v_min_u32', RE[j], hx(224), RE[j])
        g.valu('v_lshlrev_b32', RB[j], 3, RE[j])
        g.bload('buffer_load_ushort', RB[j], RB[j], s(sRP, 4), w2)
    WO_ = []
    for k in range(3):
        rho = D6[k]
        gi16 = tv(); g.valu('v_mul_u32_u24', gi16, 6, rho); g.valu('v_sub_u32', gi16, Gk[k], gi16); g.valu('v_lshl_add_u32', gi16, gi16, 4, w96)
        g1 = tv(); g.valu('v_bfe_u32', g1, rho, 3, 1)
        g2 = tv(); g.valu('v_lshrrev_b32', g2, 4, rho)
        jj = tv(); g.valu('v_and_b32', jj, 7, rho)
        p = tv(); g.valu('v_and_b32', p, 4, jj); g.valu('v_add_u32', p, p, jj); g.valu('v_lshl_add_u32', p, g1, 2, p)
        g.valu('v_mul_u32_u24', g2, 48, g2); g.valu('v_add_u32', p, p, g2)
        g.valu('v_mul_u32_u24', p, hx(384), p); g.valu('v_add_u32', p, p, gi16)
        WO_.append(p)
    sWOL = sl_(); g.salu('s_add_u32', sWOL, wsrc, WOL)
    sWR = sl_(); g.salu('s_add_u32', sWR, wsrc, OB)
    sBI = sl_(); g.salu('s_mul_i32', sBI, s(sWV), 4352); g.salu('s_add_u32', sBI, sBI, BIAS)
    wso = lambda st: (96 * (st & 1) + 16 * (st >> 1)) * 384
    def wo_dma(st, base, lds):
        so = g.st(); g.salu('s_mov_b32', so, im(wso(st)))
        for k in range(3):
            g.salu('s_add_u32', 'm0', base, (st % 3) * 3072 + k * 1024)
            g.dma(WO_[k], s(sWO, 4), so, lds=lds)
    hi = tv(); g.valu('v_lshrrev_b32', hi, 5, lane)
    q = tv(); g.valu('v_and_b32', q, 31, lane)
    g4 = tv(); g.valu('v_lshrrev_b32', g4, 4, lane)
    m16 = tv(); g.valu('v_and_b32', m16, 15, lane)
    rr = tv(); g.valu('v_bfe_u32', rr, lane, 2, 2)
    cc = tv(); g.valu('v_and_b32', cc, 3, lane)
    l7 = tv(); g.valu('v_and_b32', l7, 7, lane)
    cb, t2 = tv(), tv()
    g.valu('v_and_b32', cb, 1, g4)
    cm = tv(); g.valu('v_mul_u32_u24', cm, hx(1152), rr); g.valu('v_lshl_add_u32', cm, cc, 3, cm); g.valu('v_add_u32', cm, w96, cm)
    wA = tv(); g.valu('v_mul_u32_u24', wA, hx(SPART), hi); g.valu('v_add_u32', wA, wA, cm)
    wB = tv(); g.valu('v_mul_u32_u24', wB, hx(320), cb); g.valu('v_add_u32', wB, wB, wA)
    g.valu('v_lshl_add_u32', wA, cb, 5, wA)
    wV = tv(); g.valu('v_mul_u32_u24', wV, hx(SPART), g4); g.valu('v_add_u32', wV, wV, cm)
    wo8 = tv(); g.valu('v_lshl_add_u32', wo8, g4, 3, rr); g.valu('v_mul_u32_u24', wo8, hx(96), wo8); g.valu('v_lshl_add_u32', wo8, cc, 3, wo8)
    wo16 = tv(); g.valu('v_lshl_add_u32', wo16, cc, 3, wo8)
    g.valu('v_add_u32', v(vWOL[0]), sWOL, wo16); g.valu('v_add_u32', v(vWOL[1]), sWOL, wo8)
    g.valu('v_add_u32', v(vWR[0]), sWR, wo16); g.valu('v_add_u32', v(vWR[1]), sWR, wo8)
    g.valu('v_bfe_u32', t2, q, 1, 3); g.valu('v_xor_b32', t2, t2, hi); g.valu('v_lshlrev_b32', t2, 4, t2)
    q384 = tv(); g.valu('v_mul_u32_u24', q384, hx(384), q)
    g.valu('v_add_u32', v(vX32[0]), q384, t2)
    for k in (1, 2, 3): g.valu('v_xor_b32', v(vX32[k]), im(k << 5), v(vX32[0]))
    t3, t4 = tv(), tv()
    g.valu('v_and_b32', t3, 1, rr); g.valu('v_lshl_add_u32', t3, t3, 3, cc)
    g.valu('v_lshrrev_b32', t4, 1, rr); g.valu('v_lshl_add_u32', t3, t4, 2, t3)
    g.valu('v_lshrrev_b32', t4, 1, t3); g.valu('v_xor_b32', t4, t4, g4); g.valu('v_lshlrev_b32', t4, 4, t4)
    g.valu('v_mul_u32_u24', t3, hx(384), t3); g.valu('v_add_u32', v(vX16[0]), t3, t4)
    g.valu('v_xor_b32', v(vX16[1]), 64, v(vX16[0]))
    t6 = tv(); g.valu('v_xor_b32', t6, g4, l7); g.valu('v_lshlrev_b32', t6, 4, t6)
    m384 = tv(); g.valu('v_mul_u32_u24', m384, hx(384), m16); g.valu('v_add_u32', t6, t6, m384)
    g.valu('v_add_u32', v(vOR[0]), hx(OB), t6); g.valu('v_xor_b32', v(vOR[1]), 64, v(vOR[0]))
    t8 = tv(); g.valu('v_add_u32', t8, w2, hi); g.valu('v_xor_b32', t8, t8, l7); g.valu('v_lshlrev_b32', t8, 4, t8)
    g.valu('v_add_u32', t8, t8, q384); g.valu('v_add_u32', v(vOW), hx(OB), t8)
    w6 = sl_(); g.salu('s_mul_i32', w6, s(sWV), 6)
    fm = tv(); g.valu('v_lshrrev_b32', fm, 1, m16)
    g.valu('v_add_u32', m384, hx(YB), m384)
    ty = tv(); g.valu('v_add_u32', ty, w6, g4); g.valu('v_xor_b32', ty, ty, fm); g.valu('v_lshl_add_u32', v(vYW[0]), ty, 4, m384)
    g.valu('v_add3_u32', ty, w6, hi, 4); g.valu('v_xor_b32', ty, ty, fm); g.valu('v_lshl_add_u32', ty, ty, 4, m384)
    g.valu('v_lshl_add_u32', v(vYW[1]), cb, 3, ty)
    g.valu('v_add_u32', ty, s(sXB), l16); g.valu('v_add_u32', v(vYR), hx(YB), ty)
    cp = tv(); g.valu('v_lshlrev_b32', cp, 2, hi); g.valu('v_sub_u32', cp, cp, l7); g.valu('v_add_u32', cp, 7, cp)
    t9, t10 = tv(), tv()
    g.valu('v_and_b32', t9, 1, cp); g.valu('v_mul_u32_u24', t9, hx(66 * 16), t9)
    g.valu('v_bfe_u32', t10, cp, 1, 1); g.valu('v_mul_u32_u24', t10, hx(136 * 16), t10); g.valu('v_add_u32', t9, t9, t10)
    g.valu('v_lshrrev_b32', t10, 2, cp); g.valu('v_lshl_add_u32', t9, t10, 4, t9)
    g.valu('v_lshrrev_b32', t10, 3, q); g.valu('v_sub_u32', t10, 3, t10); g.valu('v_lshl_add_u32', t9, t10, 6, t9)
    g.valu('v_add_u32', v(vBI), sBI, t9)
    t11 = tv(); g.valu('v_bfe_u32', t11, lane, 2, 1); g.valu('v_xor_b32', t11, t11, hi)
    g.valu('v_cvt_f32_u32', t11, t11); g.valu('v_mul_f32', v(vCM), hx(f2u(MVC)), t11)
    IR = []
    for j in range(4):
        ir = tv(); g.valu('v_mul_u32_u24', ir, hx(137), RE[j]); g.valu('v_lshrrev_b32', ir, 11, ir)
        g.valu('v_add_u32', ir, ir, RE[j]); g.valu('v_sub_u32', ir, hx(238), ir); g.valu('v_lshlrev_b32', ir, 2, ir)
        g.valu('v_add_u32', ir, sBI, ir)
        IR.append(ir)

    bufs = [R4 + 4 * i for i in range(8)]
    TA = [[tv(), tv(), tv()], [tv(), tv(), tv()]]
    g.tag = 'next'
    for p in range(6):
        b = p % 3; pb = (p + 2) % 3
        wr = [L(f'Sd{b}'), L(f'S{b}')]
        if p == 0: wr += [L('Xn0'), L('Xn')]
        else: wr += [L(f'S{pb}'), L(f'Sd{pb}')]
        g.barrier(writes=wr, lgkm=None)
        if 1 <= p <= 3: group_dma(p + 2)
        if p == 4:
            xb1 = g.st(); g.salu('s_add_u32', xb1, s(sXB), X1)
            g.x_dma(NWG, xb1, [L('Sd0'), L('Xd')], False)
        if p == 5:
            for st in range(3): wo_dma(st, sWR, [L('Sd1'), L('wr')])
        aA, aB, aVv = TA[p & 1]
        g.valu('v_add_u32', aA, hx(SBUF[b]), wA); g.valu('v_add_u32', aB, hx(SBUF[b]), wB); g.valu('v_add_u32', aVv, hx(SBUF[b] + 768), wV)
        for e in range(2):
            st = 2 * p + e
            for Tt in range(3):
                for u in range(2):
                    g.dsr('ds_read_b64_tr_b16', a(aQK(st, Tt).n + 2 * u, 2), aB if Tt == 1 else aA,
                          e * 2 * SPART + u * 4608 + (0, 64, 416)[Tt], lds=[L(f'S{b}')])
            b0, b1 = bufs[(2 * st) % 8], bufs[(2 * st + 1) % 8]
            g.x32_read(0, st, b0, L('Xn')); g.x32_read(1, st, b1, L('Xn'))
            g.qk_step(st, R2, b0); g.qk_step(st, R3, b1)
        for dt in range(3):
            for u in range(2):
                g.dsr('ds_read_b64_tr_b16', a(aV(p, dt).n + 2 * u, 2), aVv, u * 4608 + 32 * dt, lds=[L(f'S{b}')])
        if p == 3:
            for j in range(4):
                g.valu('v_lshlrev_b32', RB[j], 16, RB[j]); g.valu('v_mul_f32', RB[j], hx(f2u(SQ48)), RB[j])
                for c in range(4):
                    g.dsw('ds_write_b32', IR[j], RB[j], CBASE[c] * 16 - 4 * c, lds=[L('bias')])
    g.barrier(writes=[L('S2'), L('wold')], lgkm=None)
    for st in range(3, 6): wo_dma(st, sWOL, [L('wold'), L('Xd')])
    g.pack(R2, R2, 24)
    g.toggle(vX32, True)
    tail_next(g)
    return head, g

def epilogue(after_idx):
    g0, _, _ = body()
    g = G(); g.tn = 8
    for n, i in enumerate(g0.insts):
        if n in after_idx and i.tag in ('cur', 'prev'):
            g.insts.append(i)
    g.tag = 'cur'
    g.barrier(writes=[L('O'), L('Y')], lgkm=None)
    g.win_addr(0, sYO, YV, YT)
    g.salu('s_mov_b32', s(sY + 2), hx(XBYTES))
    g.outproj_tok([R2 + 4 * i for i in range(8)], R3)
    g.barrier(writes=[L('Y')], lgkm=None)
    g.ystore(R1)
    return g

def stamp(lane, real=False):
    op = 's_memrealtime' if real else 's_memtime'
    out = [f"    {op} s[100:101]", "    s_waitcnt lgkmcnt(0)"]
    if lane == 'loop':
        out += ["    s_lshr_b32 m0, s25, 8", "    s_add_u32 m0, m0, 4", "    s_nop 1", "    v_writelane_b32 v47, s100, m0"]
    else:
        out += [f"    v_writelane_b32 v47, s100, {lane}"]
    return out

def build(sched=True, verbose=True, stamps=False, prefetch=True, code_lim=4096):
    head, pro = prologue(prefetch)
    bod, mk, alpha = body()
    P = schedule(pro.insts, verbose, 'prologue', vm_gap=16) if sched else pro.insts
    if sched:
        B = schedule(bod.insts, verbose, 'body')
    else:
        B = bod.insts
        for n, i in enumerate(B): i.idx = n
    pos = B.index(mk)
    after = {i.idx for i in B[pos + 1:]}
    epi = epilogue(after)
    E = schedule(epi.insts, verbose, 'epilogue', vm_gap=16) if sched else epi.insts
    F = first_block().insts
    back = Inst('s_branch L_loop', 'branch', nbytes=4)
    pa = B.index(alpha)
    fb = Inst('s_cbranch_vccnz L_first', 'branch', nbytes=4); fb.t = alpha.t
    lb = Inst('L_back:', 'label', cost=0, nbytes=0); lb.t = alpha.t
    B = B[:pa] + [fb, lb] + B[pa:] + [back]
    pos = B.index(mk)
    B1 = B[:pos + 1]
    Bf = B[:pa + 1] + F + B[pa + 1:]
    H = head.insts
    paths = [H + P + Bf + B + B + B1 + E, H + P + Bf + B1 + E]
    waitcnt_pass(paths)
    hazard_pass(paths)
    lines = []
    if stamps: lines += ["    v_mov_b32 v47, 0"] + stamp(0, True) + stamp(2) + ["    s_load_dwordx2 s[36:37], s[0:1], 64"]
    lines += emit(H)
    if stamps:
        lines += stamp(3)
        k = 0
        for i in P:
            lines += emit([i])
            if i.kind == 'barrier':
                lines += [f"    s_memtime s[100:101]", "    s_waitcnt lgkmcnt(0)", f"    v_writelane_b32 v47, s100, {40 + k}"]; k += 1
    else:
        lines += emit(P)
    lines.append("L_loop:")
    if stamps: lines += stamp('loop')
    if stamps:
        bl = []; acc = 0; nxt = 0; k = 0; marks = []
        for i in B[:-1]:
            if i.kind in ISMFMA:
                if acc >= nxt and k < 18:
                    bl.append(f"    s_memtime s[{48 + 2 * k}:{49 + 2 * k}]"); marks.append(acc); k += 1; nxt += 320
                acc += 32 if i.kind == 'mfma32' else 16
            bl += emit([i])
        bl.append("    s_waitcnt lgkmcnt(0)")
        for j in range(k): bl.append(f"    v_writelane_b32 v47, s{48 + 2 * j}, {16 + j}")
        bl += emit([B[-1]])
        lines += bl
    else:
        lines += emit(B)
    lines.append("L_first:")
    lines += emit(F)
    lines.append("L_epi:")
    if stamps: lines += stamp(8)
    lines += emit(E)
    if stamps:
        lines += stamp(9) + ["    s_waitcnt vmcnt(0)"] + stamp(10) + stamp(1, True)
        lines += ["    s_mov_b32 s38, 262144", "    s_mov_b32 s39, 0x00020000", "    s_lshl_b32 s100, s2, 2", "    s_add_u32 s100, s100, s24", "    s_lshl_b32 s100, s100, 8",
                  "    v_mbcnt_lo_u32_b32 v46, -1, 0", "    v_mbcnt_hi_u32_b32 v46, -1, v46", "    v_lshlrev_b32 v46, 2, v46",
                  "    buffer_store_dword v47, v46, s[36:39], s100 offen",
                  "    s_load_dwordx2 s[36:37], s[0:1], 56", "    s_mov_b32 s38, 64", "    s_waitcnt lgkmcnt(0)",
                  "    buffer_store_dword v47, v46, s[36:39], s100 offen"]
    lines.append("L_end:")
    lines.append("    s_endpgm")
    if verbose:
        print("nops:", sum(1 for l in lines if 's_nop' in l), "waits:", sum(1 for l in lines if 's_waitcnt' in l), "lines:", len(lines))
    hdr = open(os.path.join(os.path.dirname(__file__), '..', 'cdna_kernels', NAME + '.s.ref')).read().split('\n')
    top = [l for l in hdr if l.startswith(';') and '@launch' not in l]
    out = top + [f"; @launch grid=({NWG},1,1) block=(256,1,1) lds={LDS_TOTAL}",
                 '.amdgcn_target "amdgcn-amd-amdhsa--gfx950"', '.text', f'.globl {NAME}_kernel', '.p2align 8',
                 f'.type {NAME}_kernel,@function', f'.set CODE_LIM, {code_lim}', f'{NAME}_kernel:'] + lines + [
        '.section .rodata,"a"', '.p2align 6', f'.amdhsa_kernel {NAME}_kernel',
        '  .amdhsa_next_free_vgpr 512', '  .amdhsa_next_free_sgpr 102', '  .amdhsa_accum_offset 256',
        '  .amdhsa_group_segment_fixed_size 0', '  .amdhsa_kernarg_size 72', '  .amdhsa_user_sgpr_count 2',
        '  .amdhsa_user_sgpr_kernarg_segment_ptr 1', '  .amdhsa_system_sgpr_workgroup_id_x 1', '.end_amdhsa_kernel']
    return "\n".join(out) + "\n"

if __name__ == '__main__':
    sched = '--nosched' not in sys.argv
    outp = [x for x in sys.argv[1:] if not x.startswith('--')]
    path = outp[0] if outp else os.path.join(os.path.dirname(__file__), '..', 'cdna_kernels', NAME + '.s')
    import subprocess, tempfile
    args = (sched, False, '--stamps' in sys.argv, '--nopf' not in sys.argv)
    open(path, 'w').write(build(*args))
    with tempfile.TemporaryDirectory() as td:
        subprocess.run(['clang', '-x', 'assembler', '-target', 'amdgcn-amd-amdhsa', '-mcpu=gfx950', '-c', path, '-o', td + '/a.o'], check=True)
        subprocess.run(['llvm-objcopy', '-O', 'binary', '-j', '.text', td + '/a.o', td + '/a.bin'], check=True)
        size = os.path.getsize(td + '/a.bin')
    print("code bytes", size)
    open(path, 'w').write(build(sched, True, *args[2:], code_lim=(size - 256) & ~3))
    print("wrote", path)
```
